```python
import torch

def _softmax(x, axis=-1):
    return torch.softmax(x, dim=axis)
def _gelu(x):
    return torch.nn.functional.gelu(x, approximate="tanh")
def _silu(x):
    return torch.nn.functional.silu(x)
def _sigmoid(x):
    return torch.sigmoid(x)
def _layernorm(x, axis=-1, eps=1e-5):
    m = x.mean(dim=axis, keepdim=True)
    v = x.var(dim=axis, keepdim=True, unbiased=False)
    return (x - m) / torch.sqrt(v + eps)
def _scatter_add(tgt, idx, src, axis=0):
    return tgt.clone().index_add_(axis, idx, src)
def _segment_sum(src, seg, n):
    out = torch.zeros((n,) + src.shape[1:], dtype=src.dtype)
    return out.index_add_(0, seg, src)
def _pad(x, pw):
    flat = tuple(v for pair in reversed(pw) for v in pair)
    return torch.nn.functional.pad(x, flat)

kernel_name = 'concat_heads__grouped_kv_mqa__compressed_kv_cla__prompt'

def setup_inputs():

    _w = (lambda a: (lambda t: t.to(torch.bfloat16) if t.is_floating_point() else t)(torch.as_tensor(a)))
    def _A_setup():
        B, S, D, H = 1, 2048, 1024, 32
        Dh = D // H
        return {
            "x": _w((lambda *s: torch.randn(*s, dtype=torch.bfloat16) * 0.05)(B, S, D)),
            "wq": _w((lambda *s: torch.randn(*s, dtype=torch.bfloat16) * 0.8)(D, H * Dh)),
            "wk": _w((lambda *s: torch.randn(*s, dtype=torch.bfloat16) * 0.8)(D, Dh)),
            "wv": _w((lambda *s: torch.randn(*s, dtype=torch.bfloat16) * 0.05)(D, Dh)),
            "wo": _w((lambda *s: torch.randn(*s, dtype=torch.bfloat16) * 0.05)(H * Dh, D)),
        }
    _A_in = _A_setup()

    def _B_setup():
        B, H, Sq, Sk, D, M = 1, 32, 2048, 2048, 128, 1024
        Dc = 4 * D
        return {
            "x": _w((lambda *s: torch.randn(*s, dtype=torch.bfloat16) * 1.6)(B, Sq, M)),
            "c_kv": _w((lambda *s: torch.randn(*s, dtype=torch.bfloat16) * 0.2)(B, Sk, Dc)),
            "w_q": _w((lambda *s: torch.randn(*s, dtype=torch.bfloat16) * 6.4)(M, H, D) * (M ** -0.5)),
            "w_uk": _w((lambda *s: torch.randn(*s, dtype=torch.bfloat16) * 6.4)(Dc, H, D) * (Dc ** -0.5)),
            "w_uv": _w((lambda *s: torch.randn(*s, dtype=torch.bfloat16) * 0.2)(Dc, H, D) * (Dc ** -0.5)),
            "w_o": _w((lambda *s: torch.randn(*s, dtype=torch.bfloat16) * 0.2)(H, D, M) * ((H * D) ** -0.5)),
        }
    _B_in = _B_setup()

    return {
        "A_x": _A_in["x"],
        "A_wq": _A_in["wq"],
        "A_wk": _A_in["wk"],
        "A_wv": _A_in["wv"],
        "A_wo": _A_in["wo"],
        "B_x": _B_in["x"],
        "B_c_kv": _B_in["c_kv"],
        "B_w_q": _B_in["w_q"],
        "B_w_uk": _B_in["w_uk"],
        "B_w_uv": _B_in["w_uv"],
        "B_w_o": _B_in["w_o"],
    }

def reference(A_x, A_wq, A_wk, A_wv, A_wo, B_x, B_c_kv, B_w_q, B_w_uk, B_w_uv, B_w_o):
    def _A_ref(x, wq, wk, wv, wo):
        B, S, D = x.shape
        H = 32
        Dh = D // H
        q = (lambda x, *d: x.permute(*d))((x @ wq).reshape(B, S, H, Dh), 0, 2, 1, 3)
        k = x @ wk
        v = x @ wv
        scores = torch.einsum("bhqd,bkd->bhqk", q, k) * (Dh ** -0.5)
        p = _softmax(scores, axis=-1)
        o = torch.einsum("bhqk,bkd->bhqd", p, v)
        return (lambda x, *d: x.permute(*d))(o, 0, 2, 1, 3).reshape(B, S, H * Dh) @ wo

    def _B_ref(x, c_kv, w_q, w_uk, w_uv, w_o):
        B, Sq, M = x.shape[0], x.shape[1], x.shape[2]
        Sk = c_kv.shape[1]
        H, D = w_q.shape[1], w_q.shape[2]
        q = torch.einsum("bqm,mhd->bhqd", x, w_q)
        k = torch.einsum("bkc,chd->bhkd", c_kv, w_uk)
        v = torch.einsum("bkc,chd->bhkd", c_kv, w_uv)
        scores = torch.einsum("bhqd,bhkd->bhqk", q, k) * (D ** -0.5)
        off = Sk - Sq
        qi = torch.arange(Sq)[:, None]
        kj = torch.arange(Sk)[None, :]
        cmask = kj <= (qi + off)
        scores = torch.where(cmask[None, None], scores, -1e9)
        p = _softmax(scores, axis=-1)
        ctx = torch.einsum("bhqk,bhkd->bhqd", p, v)
        return torch.einsum("bhqd,hdm->bqm", ctx, w_o)

    a = _A_ref(A_x, A_wq, A_wk, A_wv, A_wo)
    b = _B_ref(B_x, B_c_kv, B_w_q, B_w_uk, B_w_uv, B_w_o)
    return torch.concatenate([a, b], axis=-1)
```

```python
import math, struct

class Asm:
    def __init__(self):
        self.lines = []
        self.uid = 0
    def __call__(self, s):
        self.lines.append("  " + s)
    def label(self, l):
        self.lines.append(l + ":")
    def comment(self, s):
        self.lines.append("  ; " + s)
    def newlabel(self, base):
        self.uid += 1
        return f"L_{base}_{self.uid}"
    def text(self):
        return "\n".join(self.lines) + "\n"

def f32bits(x):
    return struct.unpack("<I", struct.pack("<f", x))[0]

def vr(base, n=1):
    return f"v{base}" if n == 1 else f"v[{base}:{base+n-1}]"
def sr(base, n=1):
    return f"s{base}" if n == 1 else f"s[{base}:{base+n-1}]"

IN_A_X, IN_A_WQ, IN_A_WK, IN_A_WV, IN_A_WO, IN_B_X, IN_B_CKV, IN_B_WQ, IN_B_WUK, IN_B_WUV, IN_B_WO, D_OUT, D_DBG, D_WS = range(14)

MB = 1 << 20
WS_QA = 0
WS_KA = 4 * MB
WS_VA = 4 * MB + 256 * 1024
WS_QB = 8 * MB
WS_KB = 24 * MB
WS_VB = 40 * MB
WS_OA = 56 * MB
WS_OB = 60 * MB
WS_PART = 80 * MB
WS_SIZE = 268435456

LOG2E = 1.4426950408889634
SCALE_A = LOG2E * (32 ** -0.5)
SCALE_B = LOG2E * (128 ** -0.5)

def kernel_header(a, name):
    a.lines.append(f".globl {name}")
    a.lines.append(".p2align 8")
    a.lines.append(f".type {name},@function")
    a.label(name)

def kernel_desc(name, vgpr=256, sgpr=102, accum=None):
    if accum is None:
        accum = (vgpr + 3) // 4 * 4
    return f""".p2align 6
.amdhsa_kernel {name}
  .amdhsa_next_free_vgpr {vgpr}
  .amdhsa_next_free_sgpr {sgpr}
  .amdhsa_accum_offset {accum}
  .amdhsa_group_segment_fixed_size 0
  .amdhsa_kernarg_size 112
  .amdhsa_user_sgpr_count 2
  .amdhsa_user_sgpr_kernarg_segment_ptr 1
  .amdhsa_system_sgpr_workgroup_id_x 1
.end_amdhsa_kernel
"""

PTR0 = 32
def ptr(slot):
    return PTR0 + 2 * slot

def load_ptrs(a):
    a(f"s_load_dwordx16 s[32:47], s[0:1], 0")
    a(f"s_load_dwordx8 s[48:55], s[0:1], 64")
    a(f"s_load_dwordx4 s[56:59], s[0:1], 96")

def make_srd(a, d, slot, off_const=0, off_sreg=None, size=None):
    p = ptr(slot)
    lo = off_const & 0xffffffff
    a(f"s_add_u32 s{d}, s{p}, 0x{lo:x}")
    a(f"s_addc_u32 s{d+1}, s{p+1}, 0")
    if off_sreg is not None:
        a(f"s_add_u32 s{d}, s{d}, s{off_sreg}")
        a(f"s_addc_u32 s{d+1}, s{d+1}, 0")
        a(f"s_sub_u32 s{d+2}, 0x{(size - off_const):x}, s{off_sreg}")
    else:
        a(f"s_mov_b32 s{d+2}, 0x{(size - off_const):x}")
    a(f"s_mov_b32 s{d+3}, 0x00020000")
```

```python
from common import *

class GemmCfg:
    def __init__(self, BM, BN, WM, WN):
        self.BM, self.BN, self.WM, self.WN = BM, BN, WM, WN
        assert WM * WN == 8
        self.TM, self.TN = BM // WM, BN // WN
        self.MBK, self.NBK = self.TM // 32, self.TN // 32
        self.XSLOT = BM * 128
        self.WSLOT = 64 * BN * 2
        self.WBASE = 2 * self.XSLOT
        self.LDS = 2 * (self.XSLOT + self.WSLOT)
        self.NXD = BM // 64
        self.NWD = self.WSLOT // 8192

S_X, S_W, S_C = 4, 8, 12
S_LDX, S_LDW, S_LDC, S_NS, S_SCALE = 16, 17, 18, 19, 20
S_WAVE, S_KX, S_KW, S_WSTEP, S_CNT, S_M0B, S_T0, S_T1 = 21, 22, 23, 24, 25, 26, 27, 28
V_LANE = 1
V_XD, V_WD, V_XA, V_WA, V_C = 2, 6, 10, 14, 16
V_T = 17
V_FR = 24
V_ACC = 128

def gemm_setup(a, c):
    a(f"v_and_b32 v{V_LANE}, 63, v0")
    a(f"v_lshrrev_b32 v{V_T}, 6, v0")
    a("s_nop 0")
    a(f"v_readfirstlane_b32 s{S_WAVE}, v{V_T}")
    a("s_nop 3")
    L = V_LANE
    t0, t1, t2, t3 = V_T, V_T + 1, V_T + 2, V_T + 3
    a(f"s_lshl_b32 s{S_M0B}, s{S_WAVE}, 10")
    a(f"s_and_b32 s{S_T0}, s{S_WAVE}, 1")
    a(f"s_lshl_b32 s{S_T1}, s{S_T0}, 2")
    a(f"v_lshrrev_b32 v{t0}, 4, v{L}")
    a(f"v_or_b32 v{t0}, s{S_T1}, v{t0}")
    a(f"v_and_b32 v{t1}, 7, v{L}")
    a(f"v_xor_b32 v{t0}, v{t0}, v{t1}")
    a(f"v_lshlrev_b32 v{t0}, 4, v{t0}")
    a(f"v_lshrrev_b32 v{t1}, 3, v{L}")
    a(f"s_lshl_b32 s{S_T1}, s{S_WAVE}, 3")
    a(f"v_add_u32 v{t1}, s{S_T1}, v{t1}")
    for u in range(c.NXD):
        a(f"v_add_u32 v{t2}, {64*u}, v{t1}")
        a(f"v_mul_lo_u32 v{t2}, v{t2}, s{S_LDX}")
        a(f"v_add_u32 v{V_XD+u}, v{t2}, v{t0}")
    if c.BN == 256:
        a(f"v_lshrrev_b32 v{t0}, 5, v{L}")
        a(f"s_lshl_b32 s{S_T1}, s{S_T0}, 1")
        a(f"v_or_b32 v{t1}, s{S_T1}, v{t0}")
        a(f"v_lshlrev_b32 v{t1}, 2, v{t1}")
        a(f"v_and_b32 v{t2}, 31, v{L}")
        a(f"v_xor_b32 v{t1}, v{t1}, v{t2}")
        a(f"v_lshlrev_b32 v{t1}, 4, v{t1}")
        a(f"s_lshl_b32 s{S_T1}, s{S_WAVE}, 1")
        a(f"v_add_u32 v{t0}, s{S_T1}, v{t0}")
        rows_per_u = 16
    elif c.BN == 128:
        a(f"v_lshrrev_b32 v{t0}, 4, v{L}")
        a(f"v_lshlrev_b32 v{t1}, 2, v{t0}")
        a(f"v_and_b32 v{t2}, 15, v{L}")
        a(f"v_xor_b32 v{t1}, v{t1}, v{t2}")
        a(f"v_lshlrev_b32 v{t1}, 4, v{t1}")
        a(f"s_lshl_b32 s{S_T1}, s{S_WAVE}, 2")
        a(f"v_add_u32 v{t0}, s{S_T1}, v{t0}")
        rows_per_u = 32
    else:
        raise ValueError
    for u in range(c.NWD):
        a(f"v_add_u32 v{t2}, {rows_per_u*u}, v{t0}")
        a(f"v_mul_lo_u32 v{t2}, v{t2}, s{S_LDW}")
        a(f"v_add_u32 v{V_WD+u}, v{t2}, v{t1}")
    wmbits = int(math.log2(c.WM))
    a(f"s_and_b32 s{S_T0}, s{S_WAVE}, {c.WM-1}")
    a(f"s_lshr_b32 s{S_T1}, s{S_WAVE}, {wmbits}")
    a(f"v_and_b32 v{t0}, 31, v{L}")
    a(f"s_mul_i32 s{S_KX}, s{S_T0}, {c.TM}")
    a(f"v_add_u32 v{t0}, s{S_KX}, v{t0}")
    a(f"v_mul_lo_u32 v{V_C}, v{t0}, s{S_LDC}")
    a(f"v_lshlrev_b32 v{t0}, 7, v{t0}")
    a(f"v_lshrrev_b32 v{t1}, 5, v{L}")
    a(f"v_bfe_u32 v{t2}, v{L}, 1, 3")
    a(f"v_xor_b32 v{t2}, v{t2}, v{t1}")
    for ks in range(4):
        a(f"v_xor_b32 v{t3}, {2*ks}, v{t2}")
        a(f"v_lshl_add_u32 v{V_XA+ks}, v{t3}, 4, v{t0}")
    a(f"s_mul_i32 s{S_KX}, s{S_T1}, {c.TN*2}")
    a(f"v_lshl_add_u32 v{V_C}, v{t1}, 4, v{V_C}")
    a(f"v_add_u32 v{V_C}, s{S_KX}, v{V_C}")
    a(f"v_bfe_u32 v{t0}, v{L}, 2, 2")
    a(f"v_lshl_add_u32 v{t1}, v{t1}, 3, v{t0}")
    a(f"v_mul_u32_u24 v{t1}, {c.BN*2}, v{t1}")
    a(f"v_and_b32 v{t2}, 1, v{L}")
    a(f"v_lshl_add_u32 v{t1}, v{t2}, 3, v{t1}")
    a(f"v_add_u32 v{t1}, 0x{c.WBASE:x}, v{t1}")
    a(f"v_bfe_u32 v{t2}, v{L}, 4, 1")
    a(f"v_bfe_u32 v{t3}, v{L}, 1, 1")
    a(f"v_lshl_add_u32 v{t2}, v{t2}, 1, v{t3}")
    a(f"s_mul_i32 s{S_KX}, s{S_T1}, {c.TN//8}")
    a(f"v_add_u32 v{t2}, s{S_KX}, v{t2}")
    a(f"v_lshlrev_b32 v{t0}, 2, v{t0}")
    for nb in range(c.NBK):
        a(f"v_add_u32 v{t3}, {4*nb}, v{t2}")
        a(f"v_xor_b32 v{t3}, v{t3}, v{t0}")
        a(f"v_lshl_add_u32 v{V_WA+nb}, v{t3}, 4, v{t1}")
    a(f"s_lshl_b32 s{S_WSTEP}, s{S_LDW}, 6")
    a(f"s_mov_b32 s{S_KX}, 0")
    a(f"s_mov_b32 s{S_KW}, 0")

def xf(c, ksl, mb):
    return V_FR + (ksl * c.MBK + mb) * 4
def wf(c, ksl, nb):
    return V_FR + 2 * c.MBK * 4 + (ksl * c.NBK + nb) * 4
def acc(c, nb, mb):
    return V_ACC + (nb * c.MBK + mb) * 16

def dma_list(c, b):
    out = []
    for u in range(c.NXD):
        out.append([f"s_add_u32 m0, s{S_M0B}, 0x{b*c.XSLOT + u*8192:x}", "s_nop 0",
                    f"buffer_load_dwordx4 v{V_XD+u}, s[{S_X}:{S_X+3}], s{S_KX} offen lds"])
    for u in range(c.NWD):
        out.append([f"s_add_u32 m0, s{S_M0B}, 0x{c.WBASE + b*c.WSLOT + u*8192:x}", "s_nop 0",
                    f"buffer_load_dwordx4 v{V_WD+u}, s[{S_W}:{S_W+3}], s{S_KW} offen lds"])
    out.append([f"s_add_u32 s{S_KX}, s{S_KX}, 128", f"s_add_u32 s{S_KW}, s{S_KW}, s{S_WSTEP}"])
    return out

def emit_dma(a, c, b):
    for g in dma_list(c, b):
        for s in g:
            a(s)

def emit_reads(a, c, b, hs):
    for ksl in range(2):
        ks = 2 * hs + ksl
        for nb in range(c.NBK):
            for t in range(2):
                off = b * c.WSLOT + (ks * 16 + t * 4) * c.BN * 2
                a(f"ds_read_b64_tr_b16 {vr(wf(c,ksl,nb)+2*t,2)}, v{V_WA+nb} offset:{off}")
        for mb in range(c.MBK):
            off = b * c.XSLOT + mb * 4096
            a(f"ds_read_b128 {vr(xf(c,ksl,mb),4)}, v{V_XA+ks} offset:{off}")

def mfma_list(c):
    out = []
    for ksl in range(2):
        for mb in range(c.MBK):
            for nb in range(c.NBK):
                d = vr(acc(c, nb, mb), 16)
                out.append(f"v_mfma_f32_32x32x16_bf16 {d}, {vr(wf(c,ksl,nb),4)}, {vr(xf(c,ksl,mb),4)}, {d}")
    return out

def gemm_main(a, c, tag):
    NDMA = c.NXD + c.NWD
    Lg1 = f"L_{tag}_g1"
    Lepi = f"L_{tag}_epi"
    emit_dma(a, c, 0)
    for i in range(c.NBK * c.MBK * 16):
        a(f"v_mov_b32 v{V_ACC+i}, 0")
    a(f"s_mov_b32 s{S_CNT}, 0")
    a(f"s_cmp_ge_u32 s{S_WAVE}, 4")
    a(f"s_cbranch_scc1 {Lg1}")
    a("s_waitcnt vmcnt(0)")
    a("s_barrier")
    Ll = f"L_{tag}_g0loop"
    a.label(Ll)
    for b in range(2):
        if b == 0:
            emit_dma(a, c, 1)
        else:
            sk = a.newlabel("skip")
            a(f"s_add_u32 s{S_T0}, s{S_CNT}, 2")
            a(f"s_cmp_lt_u32 s{S_T0}, s{S_NS}")
            a(f"s_cbranch_scc0 {sk}")
            emit_dma(a, c, 0)
            a.label(sk)
        emit_reads(a, c, b, 0)
        a("s_waitcnt lgkmcnt(0)")
        a("s_barrier")
        for m in mfma_list(c):
            a(m)
        a("s_barrier")
        emit_reads(a, c, b, 1)
        a("s_waitcnt lgkmcnt(0)")
        a("s_barrier")
        for m in mfma_list(c):
            a(m)
        a("s_waitcnt vmcnt(0)")
        a("s_barrier")
    a(f"s_add_u32 s{S_CNT}, s{S_CNT}, 2")
    a(f"s_cmp_lt_u32 s{S_CNT}, s{S_NS}")
    a(f"s_cbranch_scc1 {Ll}")
    a(f"s_branch {Lepi}")
    a.label(Lg1)
    emit_dma(a, c, 1)
    a(f"s_waitcnt vmcnt({NDMA})")
    a("s_barrier")
    a("s_barrier")
    Ll = f"L_{tag}_g1loop"
    a.label(Ll)
    for b in range(2):
        emit_reads(a, c, b, 0)
        a("s_waitcnt lgkmcnt(0)")
        a("s_barrier")
        for m in mfma_list(c):
            a(m)
        a("s_barrier")
        emit_reads(a, c, b, 1)
        a("s_waitcnt vmcnt(0) lgkmcnt(0)")
        a("s_barrier")
        sk = a.newlabel("skip")
        done = a.newlabel("done")
        a(f"s_add_u32 s{S_T0}, s{S_CNT}, {2+b}")
        a(f"s_cmp_lt_u32 s{S_T0}, s{S_NS}")
        a(f"s_cbranch_scc0 {sk}")
        ml = mfma_list(c)
        dl = dma_list(c, b)
        for i, m in enumerate(ml):
            a(m)
            if i < len(dl):
                for s in dl[i]:
                    a(s)
        assert len(dl) <= len(ml)
        a(f"s_branch {done}")
        a.label(sk)
        for m in ml:
            a(m)
        a.label(done)
        if b == 0:
            a("s_barrier")
    a(f"s_add_u32 s{S_CNT}, s{S_CNT}, 2")
    a(f"s_cmp_lt_u32 s{S_CNT}, s{S_NS}")
    a(f"s_cbranch_scc0 {Lepi}")
    a("s_barrier")
    a(f"s_branch {Ll}")
    a.label(Lepi)
    a("s_nop 15")
    a("s_nop 3")
    T = V_FR
    k = 0
    for mb in range(c.MBK):
        if mb > 0:
            a(f"s_mul_i32 s{S_T0}, s{S_LDC}, {32*mb}")
        else:
            a(f"s_mov_b32 s{S_T0}, 0")
        for nb in range(c.NBK):
            A0 = acc(c, nb, mb)
            t = T + (k % 4) * 8
            k += 1
            for i in range(16):
                a(f"v_mul_f32 v{A0+i}, s{S_SCALE}, v{A0+i}")
            for q in range(4):
                a(f"v_cvt_pk_bf16_f32 v{t+2*q}, v{A0+4*q}, v{A0+4*q+1}")
                a(f"v_cvt_pk_bf16_f32 v{t+2*q+1}, v{A0+4*q+2}, v{A0+4*q+3}")
            a("s_nop 1")
            for q in (0, 2):
                a(f"v_permlane32_swap_b32 v{t+2*q}, v{t+2*q+2}")
                a(f"v_permlane32_swap_b32 v{t+2*q+1}, v{t+2*q+3}")
            for q in (0, 2):
                off = (nb * 32 + q * 8) * 2
                a(f"buffer_store_dwordx4 {vr(t+2*q,4)}, v{V_C}, s[{S_C}:{S_C+3}], s{S_T0} offen offset:{off}")
```

```python
from common import *
from gemm import *

def tile_decode(a, NT, s_t, s_m, s_n, s_tmp):
    a(f"s_and_b32 s{s_tmp}, s{s_t}, 7")
    a(f"s_lshr_b32 s{s_t}, s{s_t}, 3")
    a(f"s_and_b32 s{s_m}, s{s_tmp}, 1")
    a(f"s_lshl_b32 s{s_m}, s{s_m}, 2")
    a(f"s_and_b32 s{s_n}, s{s_t}, 3")
    a(f"s_add_u32 s{s_m}, s{s_m}, s{s_n}")
    a(f"s_lshr_b32 s{s_tmp}, s{s_tmp}, 1")
    a(f"s_mul_i32 s{s_tmp}, s{s_tmp}, {NT//4}")
    a(f"s_lshr_b32 s{s_n}, s{s_t}, 2")
    a(f"s_add_u32 s{s_n}, s{s_n}, s{s_tmp}")

def gen_k1(a):
    name = "k1_proj_kernel"
    kernel_header(a, name)
    c = GemmCfg(256, 256, 2, 4)
    load_ptrs(a)
    probs = [
        ("qb", 0,   16, IN_B_X,   2048*1024*2, 1024, IN_B_WQ,  1024*4096*2, 4096, 1024, WS_QB, 4096, SCALE_B),
        ("qa", 128, 4,  IN_A_X,   2048*1024*2, 1024, IN_A_WQ,  1024*1024*2, 1024, 1024, WS_QA, 1024, SCALE_A),
        ("kb", 160, 16, IN_B_CKV, 2048*512*2,  512,  IN_B_WUK, 512*4096*2,  4096, 512,  WS_KB, 4096, 1.0),
        ("vb", 288, 16, IN_B_CKV, 2048*512*2,  512,  IN_B_WUV, 512*4096*2,  4096, 512,  WS_VB, 4096, 1.0),
    ]
    NW_GEMM = 416
    a(f"s_cmp_ge_u32 s2, {NW_GEMM + 8}")
    a("s_cbranch_scc1 L_k1_end")
    a("s_waitcnt lgkmcnt(0)")
    a(f"s_cmp_ge_u32 s2, {NW_GEMM}")
    a("s_cbranch_scc1 L_k1_kva")
    for i, p in enumerate(probs):
        if i + 1 < len(probs):
            a(f"s_cmp_lt_u32 s2, {probs[i+1][1]}")
            a(f"s_cbranch_scc1 L_k1_{p[0]}")
        else:
            a(f"s_branch L_k1_{p[0]}")
    for p in probs:
        nm, first, NT, xs, xsz, ldx, wsl, wsz, ldw, K, coff, ldc, scale = p
        a.label(f"L_k1_{nm}")
        a(f"s_sub_u32 s60, s2, {first}")
        tile_decode(a, NT, 60, 61, 62, 63)
        a(f"s_mul_i32 s63, s61, {256*ldx*2}")
        make_srd(a, S_X, xs, 0, 63, xsz)
        a(f"s_mul_i32 s63, s62, {256*2}")
        make_srd(a, S_W, wsl, 0, 63, wsz)
        a(f"s_mul_i32 s63, s61, {256*ldc*2}")
        a(f"s_mul_i32 s60, s62, {256*2}")
        a(f"s_add_u32 s63, s63, s60")
        make_srd(a, S_C, D_WS, coff, 63, coff + 2048*ldc*2)
        a(f"s_mov_b32 s{S_LDX}, {ldx*2}")
        a(f"s_mov_b32 s{S_LDW}, {ldw*2}")
        a(f"s_mov_b32 s{S_LDC}, {ldc*2}")
        a(f"s_mov_b32 s{S_NS}, {K//64}")
        a(f"s_mov_b32 s{S_SCALE}, 0x{f32bits(scale):x}")
        a("s_branch L_k1_gemm")
    a.label("L_k1_gemm")
    gemm_setup(a, c)
    gemm_main(a, c, "k1")
    a("s_branch L_k1_end")

    a.label("L_k1_kva")
    a("v_and_b32 v1, 63, v0")
    a("v_lshrrev_b32 v2, 6, v0")
    a("s_nop 0")
    a("v_readfirstlane_b32 s21, v2")
    a("s_nop 3")
    make_srd(a, 4, IN_A_X, 0, None, 2048*1024*2)
    make_srd(a, 8, IN_A_WK, 0, None, 1024*32*2)
    make_srd(a, 12, IN_A_WV, 0, None, 1024*32*2)
    make_srd(a, 16, D_WS, WS_KA, None, WS_KA + 2048*32*2)
    make_srd(a, 64, D_WS, WS_VA, None, WS_VA + 2048*32*2)
    a("v_lshlrev_b32 v2, 4, v1")
    a("s_lshl_b32 s22, s21, 13")
    for u in range(8):
        a(f"s_add_u32 s23, s22, {u*1024}")
        a(f"s_mov_b32 m0, s23")
        a("s_nop 0")
        a(f"buffer_load_dwordx4 v2, s[8:11], s23 offen lds")
        a(f"s_add_u32 m0, s23, 0x10000")
        a("s_nop 0")
        a(f"buffer_load_dwordx4 v2, s[12:15], s23 offen lds")
    a(f"s_sub_u32 s23, s2, {NW_GEMM}")
    a("s_lshl_b32 s23, s23, 3")
    a("s_add_u32 s23, s23, s21")
    a("s_lshl_b32 s23, s23, 5")
    a("v_and_b32 v3, 31, v1")
    a("v_add_u32 v3, s23, v3")
    a("v_lshrrev_b32 v4, 5, v1")
    a("v_lshlrev_b32 v5, 11, v3")
    a("v_lshl_add_u32 v5, v4, 4, v5")
    a("v_lshlrev_b32 v6, 6, v3")
    a("v_lshl_add_u32 v6, v4, 4, v6")
    a("v_bfe_u32 v7, v1, 2, 2")
    a("v_lshl_add_u32 v7, v4, 3, v7")
    a("v_lshlrev_b32 v7, 6, v7")
    a("v_bfe_u32 v8, v1, 4, 1")
    a("v_lshl_add_u32 v7, v8, 5, v7")
    a("v_and_b32 v8, 3, v1")
    a("v_lshl_add_u32 v7, v8, 3, v7")
    a("v_add_u32 v8, 0x10000, v7")
    XR = 64
    def xload(batch):
        for i in range(16):
            ks = batch * 16 + i
            a(f"buffer_load_dwordx4 {vr(XR + (batch&1)*64 + i*4, 4)}, v5, s[4:7], 0 offen offset:{ks*32}")
    xload(0)
    a("s_waitcnt vmcnt(16)")
    a("s_barrier")
    WF = 16
    AK, AV = 192, 208
    def wread(ks):
        base = WF + (ks & 1) * 8
        for t in range(2):
            a(f"ds_read_b64_tr_b16 {vr(base+2*t,2)}, v7 offset:{ks*1024+t*256}")
        for t in range(2):
            a(f"ds_read_b64_tr_b16 {vr(base+4+2*t,2)}, v8 offset:{ks*1024+t*256}")
    wread(0)
    for batch in range(4):
        if batch < 3:
            xload(batch + 1)
        for i in range(16):
            ks = batch * 16 + i
            if ks + 1 < 64:
                wread(ks + 1)
            nout = (15 - i) + (16 if batch < 3 else 0)
            a(f"s_waitcnt vmcnt({nout}) lgkmcnt({4 if ks+1<64 else 0})")
            base = WF + (ks & 1) * 8
            x = vr(XR + (batch&1)*64 + i*4, 4)
            cK = vr(AK,16) if ks else "0"
            cV = vr(AV,16) if ks else "0"
            a(f"v_mfma_f32_32x32x16_bf16 {vr(AK,16)}, {vr(base,4)}, {x}, {cK}")
            a(f"v_mfma_f32_32x32x16_bf16 {vr(AV,16)}, {vr(base+4,4)}, {x}, {cV}")
    a("s_nop 15")
    a("s_nop 3")
    for (A0, srd, t) in ((AK, 16, 32), (AV, 64, 40)):
        for q in range(4):
            a(f"v_cvt_pk_bf16_f32 v{t+2*q}, v{A0+4*q}, v{A0+4*q+1}")
            a(f"v_cvt_pk_bf16_f32 v{t+2*q+1}, v{A0+4*q+2}, v{A0+4*q+3}")
        a("s_nop 1")
        for q in (0, 2):
            a(f"v_permlane32_swap_b32 v{t+2*q}, v{t+2*q+2}")
            a(f"v_permlane32_swap_b32 v{t+2*q+1}, v{t+2*q+3}")
        for q in (0, 2):
            a(f"buffer_store_dwordx4 {vr(t+2*q,4)}, v6, s[{srd}:{srd+3}], 0 offen offset:{q*16}")
    a.label("L_k1_end")
    a("s_endpgm")
    return name, (NW_GEMM + 8, 512, c.LDS)
```

```python
from common import *

NEG_BIG = -1.0e30
THR = float(2.0 ** 40)

SQ, SK, SV, SO = 4, 8, 12, 16
S_W, S_G, S_WG, S_I, S_N0, S_T, S_KVT, S_QMIN = 20, 21, 22, 23, 24, 25, 26, 27
S_ACT, S_ACTP, S_MSK, S_KM0, S_VM0, S_T0, S_T1, S_THR = 28, 29, 30, 31, 60, 61, 62, 63
S_HOFF, S_QB, S_NEGBIG, S_T2 = 64, 65, 66, 67
V_L = 1
V_KD, V_VD = 2, 3
V_KA, V_VA = 4, 12
V_M, V_LS, V_SUM = 16, 17, 18
V_T = 19
V_OO, V_DQ, V_QO = 24, 25, 26
V_Q, V_S, V_P, V_F, V_E, V_O = 32, 64, 96, 112, 144, 192
NSLOT = 8

def kvt_of(a, dst, s_t):
    a(f"s_sub_u32 s{dst}, 17, s{S_N0}")
    a(f"s_cmp_ge_u32 s{s_t}, s{S_N0}")
    a(f"s_cselect_b32 s{dst}, s{dst}, 0")
    a(f"s_add_u32 s{dst}, s{dst}, s{s_t}")

def b_dma(a, which, s_kvt):
    srd, vreg, sm0 = (SK, V_KD, S_KM0) if which == "K" else (SV, V_VD, S_VM0)
    a(f"s_lshl_b32 s{S_T2}, s{s_kvt}, 19")
    for u in range(4):
        a(f"s_add_u32 m0, s{sm0}, {u*4096}")
        a("s_nop 0")
        a(f"buffer_load_dwordx4 v{vreg}, s[{srd}:{srd+3}], s{S_T2} offen lds")
        if u < 3:
            a(f"s_add_u32 s{S_T2}, s{S_T2}, {16*8192}")
    a(f"s_xor_b32 s{sm0}, s{sm0}, 0x4000")

class MSched:
    def __init__(self, a, ops, pre=0, ahead=5):
        self.a, self.ops, self.ahead = a, ops, ahead
    def reads(self, i):
        kind, (x, y) = self.ops[i]
        f = V_F + (i % NSLOT) * 4
        if kind == "pv":
            db, s = x, y
            return [f"ds_read_b64_tr_b16 {vr(f+2*t,2)}, v{V_VA+db} offset:{32768 + (16*s+8*t)*256}" for t in range(2)]
        else:
            kvb, ks = x, y
            return [f"ds_read_b128 {vr(f,4)}, v{V_KA+ks} offset:{kvb*8192}"]
    def mfma(self, i):
        kind, (x, y) = self.ops[i]
        f = V_F + (i % NSLOT) * 4
        if kind == "pv":
            db, s = x, y
            d = vr(V_O + db * 16, 16)
            return f"v_mfma_f32_32x32x16_bf16 {d}, {vr(f,4)}, {vr(V_P+4*s,4)}, {d}"
        else:
            kvb, ks = x, y
            d = vr(V_S + kvb * 16, 16)
            c = d if ks else "0"
            return f"v_mfma_f32_32x32x16_bf16 {d}, {vr(f,4)}, {vr(V_Q+4*ks,4)}, {c}"
    def emit(self, npre):
        a = self.a
        n = len(self.ops)
        issued = npre
        cnt_after = {}
        total = 0
        lastpos = {}
        for i in range(npre):
            lastpos[i] = -1
        for i in range(n):
            while issued < min(n, i + self.ahead + 1):
                r = self.reads(issued)
                for s in r:
                    a(s)
                    total += 1
                lastpos[issued] = total
                issued += 1
            if lastpos[i] >= 0:
                w = total - lastpos[i]
                a(f"s_waitcnt lgkmcnt({min(w,15)})")
            a(self.mfma(i))

PV_OPS = [("pv", (db, s)) for s in range(4) for db in range(4)]
QK_OPS = [("qk", (kvb, ks)) for ks in range(8) for kvb in range(2)]
NPRE = 4

def exp_block(a, sreg, mreg):
    for pr in range(16):
        s0 = sreg + 2 * pr
        e = V_E + (pr % 4) * 2
        a(f"v_sub_f32 v{e}, v{s0}, v{mreg}")
        a(f"v_sub_f32 v{e+1}, v{s0+1}, v{mreg}")
        a(f"v_exp_f32 v{e}, v{e}")
        a(f"v_exp_f32 v{e+1}, v{e+1}")
        if pr > 0:
            pe = V_E + ((pr - 1) % 4) * 2
            a(f"v_cvt_pk_bf16_f32 v{V_P+pr-1}, v{pe}, v{pe+1}")
            if pr == 1:
                a(f"v_add_f32 v{V_SUM}, v{pe}, v{pe+1}")
            else:
                a(f"v_add_f32 v{V_SUM}, v{V_SUM}, v{pe}")
                a(f"v_add_f32 v{V_SUM}, v{V_SUM}, v{pe+1}")
    pe = V_E + (15 % 4) * 2
    a("s_nop 0")
    a(f"v_cvt_pk_bf16_f32 v{V_P+15}, v{pe}, v{pe+1}")
    a(f"v_add_f32 v{V_SUM}, v{V_SUM}, v{pe}")
    a(f"v_add_f32 v{V_SUM}, v{V_SUM}, v{pe+1}")

def b_epilogue(a):
    t0, t1 = V_T, V_T + 1
    a(f"v_mov_b32 v{t0}, v{V_LS}")
    a(f"v_mov_b32 v{t1}, v{V_LS}")
    a("s_nop 1")
    a(f"v_permlane32_swap_b32 v{t0}, v{t1}")
    a(f"v_add_f32 v{t0}, v{t0}, v{t1}")
    a(f"v_rcp_f32 v{t0}, v{t0}")
    a("s_nop 0")
    for db in range(4):
        A0 = V_O + db * 16
        t = V_F + db * 8
        for i in range(16):
            a(f"v_mul_f32 v{A0+i}, v{t0}, v{A0+i}")
        for q in range(4):
            a(f"v_cvt_pk_bf16_f32 v{t+2*q}, v{A0+4*q}, v{A0+4*q+1}")
            a(f"v_cvt_pk_bf16_f32 v{t+2*q+1}, v{A0+4*q+2}, v{A0+4*q+3}")
        a("s_nop 1")
        for q in (0, 2):
            a(f"v_permlane32_swap_b32 v{t+2*q}, v{t+2*q+2}")
            a(f"v_permlane32_swap_b32 v{t+2*q+1}, v{t+2*q+3}")
        for q in (0, 2):
            a(f"buffer_store_dwordx4 {vr(t+2*q,4)}, v{V_OO}, s[{SO}:{SO+3}], 0 offen offset:{(db*32+q*8)*2}")

def b_load_q(a, s_qb):
    a(f"s_and_b32 s{S_T0}, s{S_W}, 3")
    a(f"s_lshl_b32 s{S_T0}, s{S_T0}, 5")
    a(f"s_add_u32 s{S_QMIN}, s{s_qb}, s{S_T0}")
    a(f"v_and_b32 v{V_T}, 31, v{V_L}")
    a(f"v_add_u32 v{V_T}, s{S_QMIN}, v{V_T}")
    a(f"v_lshrrev_b32 v{V_T+1}, 5, v{V_L}")
    a(f"v_lshlrev_b32 v{V_OO}, 13, v{V_T}")
    a(f"v_lshl_add_u32 v{V_OO}, v{V_T+1}, 4, v{V_OO}")
    a(f"v_lshlrev_b32 v{V_T+1}, 2, v{V_T+1}")
    a(f"v_sub_u32 v{V_QO}, v{V_T}, v{V_T+1}")
    for ks in range(8):
        a(f"buffer_load_dwordx4 {vr(V_Q+4*ks,4)}, v{V_OO}, s[{SQ}:{SQ+3}], 0 offen offset:{ks*32}")
    a(f"v_mov_b32 v{V_M}, s{S_NEGBIG}")
    a(f"v_mov_b32 v{V_LS}, 0")
    for i in range(64):
        a(f"v_mov_b32 v{V_O+i}, 0")

def job_flags(a):
    kvt_of(a, S_KVT, S_T)
    a(f"s_lshl_b32 s{S_T0}, s{S_KVT}, 6")
    a(f"s_add_u32 s{S_T1}, s{S_QMIN}, 31")
    a(f"s_cmp_le_u32 s{S_T0}, s{S_T1}")
    a(f"s_cselect_b32 s{S_ACT}, 1, 0")
    a(f"s_cmp_ge_u32 s{S_T}, 17")
    a(f"s_cselect_b32 s{S_ACT}, 0, s{S_ACT}")
    a(f"s_add_u32 s{S_T0}, s{S_T0}, 63")
    a(f"s_cmp_gt_u32 s{S_T0}, s{S_QMIN}")
    a(f"s_cselect_b32 s{S_MSK}, 1, 0")

def gen_attn_b(a):
    a.label("L_b_start")
    a(f"v_and_b32 v{V_L}, 63, v0")
    a(f"v_lshrrev_b32 v{V_T}, 6, v0")
    a("s_nop 0")
    a(f"v_readfirstlane_b32 s{S_W}, v{V_T}")
    a("s_nop 3")
    a(f"s_lshr_b32 s{S_G}, s{S_W}, 2")
    a(f"s_and_b32 s{S_T0}, s2, 7")
    a(f"s_lshr_b32 s{S_T1}, s2, 3")
    a(f"s_lshl_b32 s{S_T0}, s{S_T0}, 2")
    a(f"s_and_b32 s{S_I}, s{S_T1}, 3")
    a(f"s_add_u32 s{S_T0}, s{S_T0}, s{S_I}")
    a(f"s_lshr_b32 s{S_I}, s{S_T1}, 2")
    a(f"s_lshl_b32 s{S_HOFF}, s{S_T0}, 8")
    sz = 2048 * 4096 * 2
    make_srd(a, SQ, D_WS, WS_QB, S_HOFF, WS_QB + sz)
    make_srd(a, SK, D_WS, WS_KB, S_HOFF, WS_KB + sz)
    make_srd(a, SV, D_WS, WS_VB, S_HOFF, WS_VB + sz)
    make_srd(a, SO, D_WS, WS_OB, S_HOFF, WS_OB + sz)
    a(f"s_mov_b32 s{S_THR}, 0x{f32bits(THR):x}")
    a(f"s_mov_b32 s{S_NEGBIG}, 0x{f32bits(NEG_BIG):x}")
    a(f"s_lshl_b32 s{S_T0}, s{S_I}, 1")
    a(f"s_add_u32 s{S_T0}, s{S_T0}, 2")
    a(f"s_cmp_eq_u32 s{S_G}, 0")
    a(f"s_cselect_b32 s{S_N0}, s{S_T0}, 18")
    a(f"s_lshl_b32 s{S_T0}, s{S_I}, 7")
    a(f"s_sub_u32 s{S_T1}, {15*128}, s{S_T0}")
    a(f"s_cmp_eq_u32 s{S_G}, 0")
    a(f"s_cselect_b32 s{S_QB}, s{S_T0}, s{S_T1}")
    b_load_q(a, S_QB)
    t0, t1, t2, t3 = V_T, V_T + 1, V_T + 2, V_T + 3
    a(f"s_and_b32 s{S_T0}, s{S_W}, 3")
    a(f"s_lshl_b32 s{S_T1}, s{S_T0}, 2")
    a(f"v_lshrrev_b32 v{t0}, 4, v{V_L}")
    a(f"v_add_u32 v{t1}, s{S_T1}, v{t0}")
    a(f"v_and_b32 v{t2}, 15, v{V_L}")
    a(f"v_xor_b32 v{t3}, v{t2}, v{t1}")
    a(f"v_lshlrev_b32 v{t1}, 13, v{t1}")
    a(f"v_lshl_add_u32 v{V_KD}, v{t3}, 4, v{t1}")
    a(f"v_lshlrev_b32 v{t0}, 2, v{t0}")
    a(f"v_xor_b32 v{t3}, v{t2}, v{t0}")
    a(f"v_lshl_add_u32 v{V_VD}, v{t3}, 4, v{t1}")
    a(f"s_lshl_b32 s{S_T1}, s{S_G}, 16")
    a(f"s_lshl_b32 s{S_T0}, s{S_T0}, 10")
    a(f"s_add_u32 s{S_KM0}, s{S_T1}, s{S_T0}")
    a(f"s_add_u32 s{S_VM0}, s{S_KM0}, 0x8000")
    a(f"v_and_b32 v{t0}, 31, v{V_L}")
    a(f"v_lshlrev_b32 v{t0}, 8, v{t0}")
    a(f"v_add_u32 v{t0}, s{S_T1}, v{t0}")
    a(f"v_lshrrev_b32 v{t1}, 5, v{V_L}")
    a(f"v_xor_b32 v{t2}, v{t2}, v{t1}")
    for ks in range(8):
        a(f"v_xor_b32 v{t3}, {2*ks}, v{t2}")
        a(f"v_lshl_add_u32 v{V_KA+ks}, v{t3}, 4, v{t0}")
    a(f"v_bfe_u32 v{t0}, v{V_L}, 2, 2")
    a(f"v_lshl_add_u32 v{t1}, v{t1}, 2, v{t0}")
    a(f"v_lshlrev_b32 v{t1}, 8, v{t1}")
    a(f"v_add_u32 v{t1}, s{S_T1}, v{t1}")
    a(f"v_and_b32 v{t2}, 1, v{V_L}")
    a(f"v_lshl_add_u32 v{t1}, v{t2}, 3, v{t1}")
    a(f"v_bfe_u32 v{t2}, v{V_L}, 4, 1")
    a(f"v_bfe_u32 v{t3}, v{V_L}, 1, 1")
    a(f"v_lshl_add_u32 v{t2}, v{t2}, 1, v{t3}")
    a(f"v_lshlrev_b32 v{t0}, 2, v{t0}")
    for db in range(4):
        a(f"v_add_u32 v{t3}, {4*db}, v{t2}")
        a(f"v_xor_b32 v{t3}, v{t3}, v{t0}")
        a(f"v_lshl_add_u32 v{V_VA+db}, v{t3}, 4, v{t1}")
        a(f"v_xor_b32 v{V_VA+db}, 0x4000, v{V_VA+db}")
    a(f"s_mov_b32 s{S_T}, 0")
    kvt_of(a, S_KVT, S_T)
    b_dma(a, "K", S_KVT)
    b_dma(a, "V", S_KVT)
    a(f"s_mov_b32 s{S_T}, 1")
    kvt_of(a, S_KVT, S_T)
    b_dma(a, "K", S_KVT)
    a(f"s_mov_b32 s{S_T}, 0")
    a(f"s_mov_b32 s{S_ACTP}, 0")
    a("s_waitcnt vmcnt(8)")
    a("s_barrier")
    a(f"s_cmp_eq_u32 s{S_G}, 0")
    a("s_cbranch_scc1 L_b_loop")
    a("s_barrier")
    a.label("L_b_loop")
    a(f"s_cmp_eq_u32 s{S_T}, s{S_N0}")
    a("s_cbranch_scc1 L_b_mswitch")
    job_flags(a)
    a(f"s_lshl_b32 s{S_T0}, s{S_ACTP}, 1")
    a(f"s_or_b32 s{S_T0}, s{S_T0}, s{S_ACT}")
    a(f"s_cmp_eq_u32 s{S_T0}, 3")
    a("s_cbranch_scc0 L_b_mrare")
    MSched(a, PV_OPS + QK_OPS).emit(NPRE)
    a.label("L_b_mdone")
    for ks in range(8):
        a(f"v_xor_b32 v{V_KA+ks}, 0x4000, v{V_KA+ks}")
    for db in range(4):
        a(f"v_xor_b32 v{V_VA+db}, 0x4000, v{V_VA+db}")
    a(f"s_cmp_ge_u32 s{S_T}, 17")
    a("s_cbranch_scc1 L_b_fin")
    a(f"s_cmp_ge_u32 s{S_T}, 16")
    a("s_cbranch_scc1 L_b_mw0")
    a("s_waitcnt vmcnt(4)")
    a.label("L_b_mw0b")
    a("s_barrier")
    a(f"s_add_u32 s{S_T0}, s{S_T}, 1")
    a(f"s_cmp_ge_u32 s{S_T0}, 17")
    a("s_cbranch_scc1 L_b_nodma")
    kvt_of(a, S_T1, S_T0)
    b_dma(a, "V", S_T1)
    a(f"s_add_u32 s{S_T0}, s{S_T}, 2")
    a(f"s_cmp_ge_u32 s{S_T0}, 17")
    a("s_cbranch_scc1 L_b_nodma")
    kvt_of(a, S_T1, S_T0)
    b_dma(a, "K", S_T1)
    a.label("L_b_nodma")
    a(f"s_cmp_eq_u32 s{S_ACT}, 0")
    a("s_cbranch_scc1 L_b_send")
    a(f"s_cmp_eq_u32 s{S_MSK}, 0")
    a("s_cbranch_scc1 L_b_nomask")
    a(f"s_lshl_b32 s{S_T0}, s{S_KVT}, 6")
    a(f"v_subrev_u32 v{V_DQ}, s{S_T0}, v{V_QO}")
    a(f"v_mov_b32 v{V_T}, s{S_NEGBIG}")
    for kvb in range(2):
        for r in range(16):
            cst = kvb * 32 + 8 * (r >> 2) + (r & 3)
            a(f"v_cmp_le_i32 vcc, {cst}, v{V_DQ}")
            a("s_nop 1")
            a(f"v_cndmask_b32 v{V_S+kvb*16+r}, v{V_T}, v{V_S+kvb*16+r}, vcc")
    a.label("L_b_nomask")
    exp_block(a, V_S, V_M)
    a(f"v_cmp_nge_f32 vcc, s{S_THR}, v{V_SUM}")
    a("s_nop 0")
    a("s_cbranch_vccnz L_b_fallback")
    a.label("L_b_cont")
    a(f"v_add_f32 v{V_LS}, v{V_LS}, v{V_SUM}")
    ms = MSched(a, PV_OPS)
    for i in range(NPRE):
        for s in ms.reads(i):
            a(s)
    a.label("L_b_send")
    a(f"s_mov_b32 s{S_ACTP}, s{S_ACT}")
    a(f"s_add_u32 s{S_T}, s{S_T}, 1")
    a(f"s_cmp_ge_u32 s{S_T}, 16")
    a("s_cbranch_scc1 L_b_w0")
    a("s_waitcnt vmcnt(8) lgkmcnt(0)")
    a("s_barrier")
    a("s_branch L_b_loop_vt")
    a.label("L_b_w0")
    a("s_waitcnt vmcnt(0) lgkmcnt(0)")
    a("s_barrier")
    a.label("L_b_loop_vt")
    a("s_branch L_b_loop")

    a.label("L_b_mw0")
    a("s_waitcnt vmcnt(0)")
    a("s_branch L_b_mw0b")
    a.label("L_b_mrare")
    a(f"s_cmp_eq_u32 s{S_ACTP}, 0")
    a("s_cbranch_scc1 L_b_mrare_nopv")
    MSched(a, PV_OPS).emit(NPRE)
    a.label("L_b_mrare_nopv")
    a(f"s_cmp_eq_u32 s{S_ACT}, 0")
    a("s_cbranch_scc1 L_b_mdone")
    MSched(a, QK_OPS).emit(0)
    a("s_branch L_b_mdone")
    a.label("L_b_mswitch")
    a(f"s_cmp_eq_u32 s{S_ACTP}, 0")
    a("s_cbranch_scc1 L_b_sw_nopv")
    MSched(a, PV_OPS).emit(NPRE)
    a.label("L_b_sw_nopv")
    a("s_nop 15")
    b_epilogue(a)
    a(f"s_lshl_b32 s{S_T0}, s{S_I}, 7")
    a(f"s_sub_u32 s{S_QB}, {15*128}, s{S_T0}")
    a("s_nop 1")
    b_load_q(a, S_QB)
    a(f"s_mov_b32 s{S_ACTP}, 0")
    job_flags(a)
    a("s_waitcnt vmcnt(0)")
    a("s_branch L_b_mrare_nopv")

    a.label("L_b_fallback")
    t0, t1 = V_T, V_T + 1
    a(f"v_max3_f32 v{t0}, v{V_S}, v{V_S+1}, v{V_S+2}")
    for i in range(3, 31, 2):
        a(f"v_max3_f32 v{t0}, v{t0}, v{V_S+i}, v{V_S+i+1}")
    a(f"v_max_f32 v{t0}, v{t0}, v{V_S+31}")
    a(f"v_mov_b32 v{t1}, v{t0}")
    a("s_nop 1")
    a(f"v_permlane32_swap_b32 v{t0}, v{t1}")
    a(f"v_max3_f32 v{t0}, v{t0}, v{t1}, v{V_M}")
    a(f"v_sub_f32 v{t1}, v{V_M}, v{t0}")
    a(f"v_exp_f32 v{t1}, v{t1}")
    a(f"v_mov_b32 v{V_M}, v{t0}")
    a(f"v_mul_f32 v{V_LS}, v{V_LS}, v{t1}")
    for i in range(64):
        a(f"v_mul_f32 v{V_O+i}, v{V_O+i}, v{t1}")
    exp_block(a, V_S, V_M)
    a("s_branch L_b_cont")

    a.label("L_b_fin")
    a("s_barrier")
    a(f"s_cmp_eq_u32 s{S_G}, 0")
    a("s_cbranch_scc0 L_b_fin1")
    a("s_nop 15")
    a(f"s_lshl_b32 s{S_T0}, s{S_W}, 14")
    a(f"v_lshlrev_b32 v{t0}, 4, v{V_L}")
    a(f"v_add_u32 v{t0}, s{S_T0}, v{t0}")
    for ch in range(16):
        a(f"ds_write_b128 v{t0}, {vr(V_O+4*ch,4)} offset:{ch*1024}")
    a(f"s_lshl_b32 s{S_T0}, s{S_W}, 9")
    a(f"s_add_u32 s{S_T0}, s{S_T0}, 0x20000")
    a(f"v_lshlrev_b32 v{t0}, 3, v{V_L}")
    a(f"v_add_u32 v{t0}, s{S_T0}, v{t0}")
    a(f"ds_write_b64 v{t0}, {vr(V_M,2)}")
    a("s_waitcnt lgkmcnt(0)")
    a("s_barrier")
    a("s_branch L_k2_end")
    a.label("L_b_fin1")
    a(f"s_and_b32 s{S_T1}, s{S_W}, 3")
    a(f"s_lshl_b32 s{S_T0}, s{S_T1}, 9")
    a(f"s_add_u32 s{S_T0}, s{S_T0}, 0x20000")
    a(f"v_lshlrev_b32 v{t0}, 3, v{V_L}")
    a(f"v_add_u32 v{t0}, s{S_T0}, v{t0}")
    a(f"ds_read_b64 {vr(V_E,2)}, v{t0}")
    a(f"s_lshl_b32 s{S_T0}, s{S_T1}, 14")
    a(f"v_lshlrev_b32 v{t0}, 4, v{V_L}")
    a(f"v_add_u32 v{t0}, s{S_T0}, v{t0}")
    for ch in range(16):
        a(f"ds_read_b128 {vr(V_Q+4*ch,4)}, v{t0} offset:{ch*1024}")
    a("s_waitcnt lgkmcnt(0)")
    a(f"v_max_f32 v{t0}, v{V_M}, v{V_E}")
    a(f"v_sub_f32 v{t1}, v{V_M}, v{t0}")
    a(f"v_sub_f32 v{V_T+2}, v{V_E}, v{t0}")
    a(f"v_exp_f32 v{t1}, v{t1}")
    a(f"v_exp_f32 v{V_T+2}, v{V_T+2}")
    a("s_nop 0")
    a(f"v_mul_f32 v{V_LS}, v{V_LS}, v{t1}")
    a(f"v_fmac_f32 v{V_LS}, v{V_E+1}, v{V_T+2}")
    for i in range(64):
        a(f"v_mul_f32 v{V_O+i}, v{V_O+i}, v{t1}")
        a(f"v_fmac_f32 v{V_O+i}, v{V_Q+i}, v{V_T+2}")
    b_epilogue(a)
    a("s_branch L_k2_end")

def gen_k2(a):
    name = "k2_attn_kernel"
    kernel_header(a, name)
    load_ptrs(a)
    a("s_cmp_ge_u32 s2, 512")
    a("s_cbranch_scc1 L_k2_end")
    a("s_waitcnt lgkmcnt(0)")
    a("s_cmp_ge_u32 s2, 256")
    a("s_cbranch_scc1 L_a_start")
    gen_attn_b(a)
    import k2a
    k2a.gen_attn_a(a)
    a.label("L_k2_end")
    a("s_endpgm")
    return name, (512, 512, 131072 + 4096)
```

```python
from common import *
THR = float(2.0 ** 40)
SQ, SK, SV, SO = 4, 8, 12, 16
S_W, S_CH, S_M0, S_T0, S_T1, S_THR, S_CLAMP, S_KOFF = 20, 21, 22, 23, 24, 25, 26, 27
V_L = 1
V_KD, V_VD, V_KA, V_VA, V_OO = 2, 3, 4, 6, 7
V_LS, V_SUM, V_T = 8, 9, 10
V_Q = 16
V_NM = 24
V_O = 40
V_P = 56
V_E = 72
V_KF = 80
V_VF = 112
V_S = 128
CH_BYTES = 16384

def exp_block(a, S):
    for pr in range(16):
        s0 = S + 2 * pr
        e = V_E + (pr % 4) * 2
        a(f"v_exp_f32 v{e}, v{s0}")
        a(f"v_exp_f32 v{e+1}, v{s0+1}")
        if pr > 0:
            pe = V_E + ((pr - 1) % 4) * 2
            a(f"v_cvt_pk_bf16_f32 v{V_P+pr-1}, v{pe}, v{pe+1}")
            if pr == 1:
                a(f"v_add_f32 v{V_SUM}, v{pe}, v{pe+1}")
            else:
                a(f"v_add_f32 v{V_SUM}, v{V_SUM}, v{pe}")
                a(f"v_add_f32 v{V_SUM}, v{V_SUM}, v{pe+1}")
    pe = V_E + (15 % 4) * 2
    a("s_nop 0")
    a(f"v_cvt_pk_bf16_f32 v{V_P+15}, v{pe}, v{pe+1}")
    a(f"v_add_f32 v{V_SUM}, v{V_SUM}, v{pe}")
    a(f"v_add_f32 v{V_SUM}, v{V_SUM}, v{pe+1}")

def kreads(a, buf, j, setno):
    for kvb in range(2):
        for ks in range(2):
            f = V_KF + setno * 16 + (kvb * 2 + ks) * 4
            a(f"ds_read_b128 {vr(f,4)}, v{V_KA+ks} offset:{buf*32768 + (j*64+kvb*32)*64}")
def vreads(a, buf, j):
    for s in range(4):
        for t in range(2):
            a(f"ds_read_b64_tr_b16 {vr(V_VF+4*s+2*t,2)}, v{V_VA} offset:{buf*32768 + 16384 + (j*64+16*s+8*t)*64}")
def qk(a, setno, sbuf):
    for ks in range(2):
        for kvb in range(2):
            f = V_KF + setno * 16 + (kvb * 2 + ks) * 4
            d = vr(V_S + sbuf * 32 + kvb * 16, 16)
            c = d if ks else vr(V_NM, 16)
            a(f"v_mfma_f32_32x32x16_bf16 {d}, {vr(f,4)}, {vr(V_Q+4*ks,4)}, {c}")
def pv(a):
    for s in range(4):
        a(f"v_mfma_f32_32x32x16_bf16 {vr(V_O,16)}, {vr(V_VF+4*s,4)}, {vr(V_P+4*s,4)}, {vr(V_O,16)}")

def dma(a, buf):
    for u in range(2):
        a(f"s_add_u32 s{S_T0}, s{S_KOFF}, {u*8192}")
        a(f"s_add_u32 m0, s{S_M0}, {buf*32768 + u*8192}")
        a("s_nop 0")
        a(f"buffer_load_dwordx4 v{V_KD}, s[{SK}:{SK+3}], s{S_T0} offen lds")
        a(f"s_add_u32 m0, s{S_M0}, {buf*32768 + 16384 + u*8192}")
        a("s_nop 0")
        a(f"buffer_load_dwordx4 v{V_VD}, s[{SV}:{SV+3}], s{S_T0} offen lds")
    a(f"s_add_u32 s{S_KOFF}, s{S_KOFF}, {CH_BYTES}")

def gen_attn_a(a):
    a.label("L_a_start")
    a(f"v_and_b32 v{V_L}, 63, v0")
    a(f"v_lshrrev_b32 v{V_T}, 6, v0")
    a("s_nop 0")
    a(f"v_readfirstlane_b32 s{S_W}, v{V_T}")
    a("s_nop 3")
    make_srd(a, SQ, D_WS, WS_QA, None, WS_QA + 2048*1024*2)
    make_srd(a, SK, D_WS, WS_KA, None, WS_KA + 2048*32*2)
    make_srd(a, SV, D_WS, WS_VA, None, WS_VA + 2048*32*2)
    make_srd(a, SO, D_WS, WS_OA, None, WS_OA + 2048*1024*2)
    t0, t1, t2, t3 = V_T, V_T+1, V_T+2, V_T+3
    a(f"s_sub_u32 s{S_T0}, s2, 256")
    a(f"s_lshl_b32 s{S_T0}, s{S_T0}, 3")
    a(f"s_add_u32 s{S_T0}, s{S_T0}, s{S_W}")
    a(f"s_lshl_b32 s{S_T0}, s{S_T0}, 5")
    a(f"v_and_b32 v{t0}, 31, v{V_L}")
    a(f"v_add_u32 v{t1}, s{S_T0}, v{t0}")
    a(f"v_lshrrev_b32 v{t2}, 5, v{V_L}")
    a(f"v_lshlrev_b32 v{V_OO}, 6, v{t1}")
    a(f"v_lshl_add_u32 v{V_OO}, v{t2}, 4, v{V_OO}")
    for ks in range(2):
        a(f"buffer_load_dwordx4 {vr(V_Q+4*ks,4)}, v{V_OO}, s[{SQ}:{SQ+3}], 0 offen offset:{ks*32}")
    a(f"v_lshrrev_b32 v{t1}, 2, v{V_L}")
    a(f"v_lshlrev_b32 v{t1}, 6, v{t1}")
    a(f"v_and_b32 v{t3}, 3, v{V_L}")
    a(f"v_lshrrev_b32 v{V_KD}, 4, v{V_L}")
    a(f"v_xor_b32 v{t3}, v{t3}, v{V_KD}")
    a(f"v_lshl_add_u32 v{V_KD}, v{t3}, 4, v{t1}")
    a(f"v_lshlrev_b32 v{V_VD}, 4, v{V_L}")
    a(f"s_lshl_b32 s{S_M0}, s{S_W}, 10")
    a(f"s_mov_b32 s{S_KOFF}, s{S_M0}")
    a(f"v_lshlrev_b32 v{t0}, 6, v{t0}")
    a(f"v_bfe_u32 v{t1}, v{V_L}, 2, 2")
    a(f"v_xor_b32 v{t3}, v{t1}, v{t2}")
    for ks in range(2):
        a(f"v_xor_b32 v{V_KA+ks}, {2*ks}, v{t3}")
        a(f"v_lshl_add_u32 v{V_KA+ks}, v{V_KA+ks}, 4, v{t0}")
    a(f"v_lshl_add_u32 v{V_VA}, v{t2}, 2, v{t1}")
    a(f"v_lshlrev_b32 v{V_VA}, 6, v{V_VA}")
    a(f"v_bfe_u32 v{t1}, v{V_L}, 4, 1")
    a(f"v_lshl_add_u32 v{V_VA}, v{t1}, 5, v{V_VA}")
    a(f"v_and_b32 v{t1}, 3, v{V_L}")
    a(f"v_lshl_add_u32 v{V_VA}, v{t1}, 3, v{V_VA}")
    dma(a, 0)
    for i in range(16):
        a(f"v_mov_b32 v{V_NM+i}, 0")
        a(f"v_mov_b32 v{V_O+i}, 0")
    a(f"v_mov_b32 v{V_LS}, 0")
    a(f"s_mov_b32 s{S_THR}, 0xbf800000")
    a(f"s_mov_b32 s{S_CLAMP}, 0xff800000")
    a(f"s_mov_b32 s{S_CH}, 0")
    a.label("L_a_loop")
    fbs = []
    for buf in range(2):
        a("s_waitcnt vmcnt(0)")
        a("s_barrier")
        if buf == 0:
            dma(a, 1)
        else:
            sk = a.newlabel("askip")
            a(f"s_cmp_ge_u32 s{S_CH}, 6")
            a(f"s_cbranch_scc1 {sk}")
            dma(a, 0)
            a.label(sk)
        kreads(a, buf, 0, 0)
        kreads(a, buf, 1, 1)
        a("s_waitcnt lgkmcnt(4)")
        qk(a, 0, 0)
        for j in range(4):
            sb = j & 1
            if j < 3:
                a("s_waitcnt lgkmcnt(0)")
                qk(a, (j + 1) & 1, sb ^ 1)
            else:
                a("s_nop 7")
                a("s_nop 3")
            vreads(a, buf, j)
            if j < 2:
                kreads(a, buf, j + 2, j & 1)
            if j == 0:
                a("s_nop 7")
            exp_block(a, V_S + sb * 32)
            fb = a.newlabel("afb")
            cont = a.newlabel("acont")
            fbs.append((fb, cont, sb, j < 3))
            a(f"v_cmp_nge_f32 vcc, s{S_THR}, v{V_SUM}")
            a("s_nop 0")
            a(f"s_cbranch_vccnz {fb}")
            a.label(cont)
            a(f"v_add_f32 v{V_LS}, v{V_LS}, v{V_SUM}")
            a(f"s_waitcnt lgkmcnt({4 if j < 2 else 0})")
            pv(a)
    a(f"s_add_u32 s{S_CH}, s{S_CH}, 2")
    a(f"s_cmp_lt_u32 s{S_CH}, 8")
    a("s_cbranch_scc1 L_a_loop")
    a("s_nop 15")
    a(f"v_mov_b32 v{t0}, v{V_LS}")
    a(f"v_mov_b32 v{t1}, v{V_LS}")
    a("s_nop 1")
    a(f"v_permlane32_swap_b32 v{t0}, v{t1}")
    a(f"v_add_f32 v{t0}, v{t0}, v{t1}")
    a(f"v_rcp_f32 v{t0}, v{t0}")
    a("s_nop 0")
    t = V_P
    for i in range(16):
        a(f"v_mul_f32 v{V_O+i}, v{t0}, v{V_O+i}")
    for q in range(4):
        a(f"v_cvt_pk_bf16_f32 v{t+2*q}, v{V_O+4*q}, v{V_O+4*q+1}")
        a(f"v_cvt_pk_bf16_f32 v{t+2*q+1}, v{V_O+4*q+2}, v{V_O+4*q+3}")
    a("s_nop 1")
    for q in (0, 2):
        a(f"v_permlane32_swap_b32 v{t+2*q}, v{t+2*q+2}")
        a(f"v_permlane32_swap_b32 v{t+2*q+1}, v{t+2*q+3}")
    for q in (0, 2):
        a(f"buffer_store_dwordx4 {vr(t+2*q,4)}, v{V_OO}, s[{SO}:{SO+3}], 0 offen offset:{q*16}")
    a("s_branch L_k2_end")
    for fb, cont, sb, has_next in fbs:
        S = V_S + sb * 32
        SN = V_S + (sb ^ 1) * 32
        a.label(fb)
        a("s_nop 15")
        a(f"v_max3_f32 v{t0}, v{S}, v{S+1}, v{S+2}")
        for i in range(3, 31, 2):
            a(f"v_max3_f32 v{t0}, v{t0}, v{S+i}, v{S+i+1}")
        a(f"v_max_f32 v{t0}, v{t0}, v{S+31}")
        a(f"v_mov_b32 v{t1}, v{t0}")
        a("s_nop 1")
        a(f"v_permlane32_swap_b32 v{t0}, v{t1}")
        a(f"v_max3_f32 v{t0}, v{t0}, v{t1}, s{S_CLAMP}")
        a(f"v_max_f32 v{t1}, 0, v{t0}")
        a(f"v_exp_f32 v{t1}, -v{t1}")
        for i in range(32):
            a(f"v_sub_f32 v{S+i}, v{S+i}, v{t0}")
        if has_next:
            for i in range(32):
                a(f"v_sub_f32 v{SN+i}, v{SN+i}, v{t0}")
        for i in range(16):
            a(f"v_sub_f32 v{V_NM+i}, v{V_NM+i}, v{t0}")
            a(f"v_mul_f32 v{V_O+i}, v{V_O+i}, v{t1}")
        a(f"v_mul_f32 v{V_LS}, v{V_LS}, v{t1}")
        a(f"s_mov_b32 s{S_THR}, 0x{f32bits(THR):x}")
        a(f"s_mov_b32 s{S_CLAMP}, 0")
        exp_block(a, S)
        a(f"s_branch {cont}")
```

```python
from common import *
from gemm import *

def gen_k3(a):
    name = "k3_out_kernel"
    kernel_header(a, name)
    c = GemmCfg(256, 128, 4, 2)
    load_ptrs(a)
    a("s_cmp_ge_u32 s2, 128")
    a("s_cbranch_scc1 L_k3_end")
    a("s_waitcnt lgkmcnt(0)")
    a("s_and_b32 s60, s2, 63")
    a("s_and_b32 s61, s60, 7")
    a("s_lshr_b32 s62, s60, 3")
    a("s_cmp_ge_u32 s2, 64")
    a("s_cbranch_scc1 L_k3_a")
    for nm, xoff, ldx, wsl, K, coff in (("b", WS_OB, 4096, IN_B_WO, 4096, 1024), ("a", WS_OA, 1024, IN_A_WO, 1024, 0)):
        a.label(f"L_k3_{nm}")
        a(f"s_mul_i32 s63, s61, {256*ldx*2}")
        make_srd(a, S_X, D_WS, xoff, 63, xoff + 2048*ldx*2)
        a(f"s_mul_i32 s63, s62, {128*2}")
        make_srd(a, S_W, wsl, 0, 63, K*1024*2)
        a(f"s_mul_i32 s63, s61, {256*2048*2}")
        a(f"s_mul_i32 s60, s62, {128*2}")
        a(f"s_add_u32 s63, s63, s60")
        make_srd(a, S_C, D_OUT, coff*2, 63, 2048*2048*2)
        a(f"s_mov_b32 s{S_LDX}, {ldx*2}")
        a(f"s_mov_b32 s{S_LDW}, {1024*2}")
        a(f"s_mov_b32 s{S_LDC}, {2048*2}")
        a(f"s_mov_b32 s{S_NS}, {K//64}")
        a(f"s_mov_b32 s{S_SCALE}, 0x{f32bits(1.0):x}")
        a("s_branch L_k3_gemm")
    a.label("L_k3_gemm")
    gemm_setup(a, c)
    gemm_main(a, c, "k3")
    a.label("L_k3_end")
    a("s_endpgm")
    return name, (128, 512, c.LDS)
```

```python
import sys
from common import *
import k1
OUT = "concat_heads__grouped_kv_mqa__compressed_kv_cla__prompt.s"
def build(out=OUT, which=("k1",)):
    a = Asm()
    kernels = []
    if "k1" in which:
        kernels.append(k1.gen_k1(a))
    if "k2" in which:
        import k2
        kernels.append(k2.gen_k2(a))
    if "k3" in which:
        import k3
        kernels.append(k3.gen_k3(a))
    hdr = open("concat_heads__grouped_kv_mqa__compressed_kv_cla__prompt.s.ref").read().split("; Override launch")[0]
    s = hdr
    for name, (g, b, lds) in kernels:
        s += f"; @launch kernel={name} grid=({g},1,1) block=({b},1,1) lds={lds}\n"
    s += '.amdgcn_target "amdgcn-amd-amdhsa--gfx950"\n.text\n'
    s += a.text()
    s += '.section .rodata,"a"\n'
    for name, _ in kernels:
        s += kernel_desc(name)
    open(out, "w").write(s)
    print("wrote", out, len(s), "bytes")
if __name__ == "__main__":
    build(which=sys.argv[1:] or ("k1", "k2", "k3"))
```

```python
import math, struct

class Asm:
    def __init__(self):
        self.lines = []
        self.uid = 0
    def __call__(self, s):
        self.lines.append("  " + s)
    def label(self, l):
        self.lines.append(l + ":")
    def comment(self, s):
        self.lines.append("  ; " + s)
    def newlabel(self, base):
        self.uid += 1
        return f"L_{base}_{self.uid}"
    def text(self):
        return "\n".join(self.lines) + "\n"

def f32bits(x):
    return struct.unpack("<I", struct.pack("<f", x))[0]

def vr(base, n=1):
    return f"v{base}" if n == 1 else f"v[{base}:{base+n-1}]"
def sr(base, n=1):
    return f"s{base}" if n == 1 else f"s[{base}:{base+n-1}]"

IN_A_X, IN_A_WQ, IN_A_WK, IN_A_WV, IN_A_WO, IN_B_X, IN_B_CKV, IN_B_WQ, IN_B_WUK, IN_B_WUV, IN_B_WO, D_OUT, D_DBG, D_WS = range(14)

MB = 1 << 20
WS_QA = 0
WS_KA = 4 * MB
WS_VA = 4 * MB + 256 * 1024
WS_QB = 8 * MB
WS_KB = 24 * MB
WS_VB = 40 * MB
WS_OA = 56 * MB
WS_OB = 60 * MB
WS_PART = 80 * MB
WS_SIZE = 268435456

LOG2E = 1.4426950408889634
SCALE_A = LOG2E * (32 ** -0.5)
SCALE_B = LOG2E * (128 ** -0.5)

def kernel_header(a, name):
    a.lines.append(f".globl {name}")
    a.lines.append(".p2align 8")
    a.lines.append(f".type {name},@function")
    a.label(name)

def kernel_desc(name, vgpr=256, sgpr=102, accum=None):
    if accum is None:
        accum = (vgpr + 3) // 4 * 4
    return f""".p2align 6
.amdhsa_kernel {name}
  .amdhsa_next_free_vgpr {vgpr}
  .amdhsa_next_free_sgpr {sgpr}
  .amdhsa_accum_offset {accum}
  .amdhsa_group_segment_fixed_size 0
  .amdhsa_kernarg_size 112
  .amdhsa_user_sgpr_count 2
  .amdhsa_user_sgpr_kernarg_segment_ptr 1
  .amdhsa_system_sgpr_workgroup_id_x 1
.end_amdhsa_kernel
"""

PTR0 = 32
def ptr(slot):
    return PTR0 + 2 * slot

def load_ptrs(a):
    a(f"s_load_dwordx16 s[32:47], s[0:1], 0")
    a(f"s_load_dwordx8 s[48:55], s[0:1], 64")
    a(f"s_load_dwordx4 s[56:59], s[0:1], 96")

def make_srd(a, d, slot, off_const=0, off_sreg=None, size=None):
    p = ptr(slot)
    lo = off_const & 0xffffffff
    a(f"s_add_u32 s{d}, s{p}, 0x{lo:x}")
    a(f"s_addc_u32 s{d+1}, s{p+1}, 0")
    if off_sreg is not None:
        a(f"s_add_u32 s{d}, s{d}, s{off_sreg}")
        a(f"s_addc_u32 s{d+1}, s{d+1}, 0")
        a(f"s_sub_u32 s{d+2}, 0x{(size - off_const):x}, s{off_sreg}")
    else:
        a(f"s_mov_b32 s{d+2}, 0x{(size - off_const):x}")
    a(f"s_mov_b32 s{d+3}, 0x00020000")

import os
WGTL = os.environ.get("WGTL")
def tl_start(a):
    if not WGTL: return
    a("s_memrealtime s[100:101]")
def tl_end(a, kidx):
    if not WGTL: return
    lab = a.newlabel("tl")
    a("s_waitcnt vmcnt(0) lgkmcnt(0)")
    a("s_memrealtime s[98:99]")
    a("v_readfirstlane_b32 s97, v0")
    a("s_waitcnt lgkmcnt(0)")
    a("s_cmp_lt_u32 s97, 64")
    a(f"s_cbranch_scc0 {lab}")
    a("s_load_dwordx2 s[92:93], s[0:1], 104")
    a("s_waitcnt lgkmcnt(0)")
    a(f"s_add_u32 s92, s92, 0x{WS_SIZE - 65536 + kidx*8192:x}")
    a("s_addc_u32 s93, s93, 0")
    a("s_mov_b32 s94, 8192")
    a("s_mov_b32 s95, 0x00020000")
    a("s_lshl_b32 s96, s2, 3")
    a("v_mov_b32 v2, s96")
    a("v_mov_b32 v4, s100")
    a("v_mov_b32 v5, s98")
    a("buffer_store_dwordx2 v[4:5], v2, s[92:95], 0 offen")
    a.label(lab)

def touch(a, slot, nbytes, s_idx, nshares, srd, vtmp, vdst):
    per = nbytes // nshares
    assert per % 8192 == 0
    a(f"s_mul_i32 s{srd+4}, s{s_idx}, {per}")
    make_srd(a, srd, slot, 0, srd+4, nbytes)
    a(f"v_lshlrev_b32 v{vtmp}, 4, v0")
    for i in range(per // 8192):
        a(f"s_mov_b32 s{srd+4}, {i*8192}")
        a(f"buffer_load_dwordx4 v[{vdst}:{vdst+3}], v{vtmp}, s[{srd}:{srd+3}], s{srd+4} offen")
```

```python
from common import *
import os

class GemmCfg:
    def __init__(self, BM, BN, WM, WN):
        self.BM, self.BN, self.WM, self.WN = BM, BN, WM, WN
        assert WM * WN == 8
        self.TM, self.TN = BM // WM, BN // WN
        self.MBK, self.NBK = self.TM // 32, self.TN // 32
        self.XSLOT = BM * 128
        self.WSLOT = 64 * BN * 2
        self.WBASE = 2 * self.XSLOT
        self.LDS = 2 * (self.XSLOT + self.WSLOT)
        self.NXD = BM // 64
        self.NWD = self.WSLOT // 8192
        self.M16 = False

S_X, S_W, S_C = 4, 8, 12
S_LDX, S_LDW, S_LDC, S_NS, S_SCALE = 16, 17, 18, 19, 20
S_WAVE, S_KX, S_KW, S_WSTEP, S_CNT, S_M0B, S_T0, S_T1 = 21, 22, 23, 24, 25, 26, 27, 28
V_LANE = 1
V_XD, V_WD, V_XA, V_WA, V_C = 2, 6, 10, 14, 16
V_T = 17
V_PF, V_PFD = 22, 23
S_PF = 29
PD = int(os.environ.get('PD', '3'))
V_FR = 24
V_ACC = 128

def gemm_setup(a, c, pfq=None):
    a(f"v_and_b32 v{V_LANE}, 63, v0")
    a(f"v_lshrrev_b32 v{V_T}, 6, v0")
    a("s_nop 0")
    a(f"v_readfirstlane_b32 s{S_WAVE}, v{V_T}")
    a("s_nop 3")
    L = V_LANE
    t0, t1, t2, t3 = V_T, V_T + 1, V_T + 2, V_T + 3
    a(f"s_lshl_b32 s{S_M0B}, s{S_WAVE}, 10")
    a(f"s_and_b32 s{S_T0}, s{S_WAVE}, 1")
    a(f"s_lshl_b32 s{S_T1}, s{S_T0}, 2")
    a(f"v_lshrrev_b32 v{t0}, 4, v{L}")
    a(f"v_or_b32 v{t0}, s{S_T1}, v{t0}")
    a(f"v_and_b32 v{t1}, 7, v{L}")
    a(f"v_xor_b32 v{t0}, v{t0}, v{t1}")
    a(f"v_lshlrev_b32 v{t0}, 4, v{t0}")
    a(f"v_lshrrev_b32 v{t1}, 3, v{L}")
    a(f"s_lshl_b32 s{S_T1}, s{S_WAVE}, 3")
    a(f"v_add_u32 v{t1}, s{S_T1}, v{t1}")
    for u in range(c.NXD):
        a(f"v_add_u32 v{t2}, {64*u}, v{t1}")
        a(f"v_mul_lo_u32 v{t2}, v{t2}, s{S_LDX}")
        a(f"v_add_u32 v{V_XD+u}, v{t2}, v{t0}")
    if c.BN == 256:
        a(f"v_lshrrev_b32 v{t0}, 5, v{L}")
        a(f"s_lshl_b32 s{S_T1}, s{S_T0}, 1")
        a(f"v_or_b32 v{t1}, s{S_T1}, v{t0}")
        a(f"v_lshlrev_b32 v{t1}, 2, v{t1}")
        if getattr(c, "M16", False):
            a(f"s_lshr_b32 s{S_T1}, s{S_WAVE}, 2")
            a(f"s_lshl_b32 s{S_T1}, s{S_T1}, 1")
            a(f"v_or_b32 v{t1}, s{S_T1}, v{t1}")
        a(f"v_and_b32 v{t2}, 31, v{L}")
        a(f"v_xor_b32 v{t1}, v{t1}, v{t2}")
        a(f"v_lshlrev_b32 v{t1}, 4, v{t1}")
        a(f"s_lshl_b32 s{S_T1}, s{S_WAVE}, 1")
        a(f"v_add_u32 v{t0}, s{S_T1}, v{t0}")
        rows_per_u = 16
    elif c.BN == 128:
        a(f"v_lshrrev_b32 v{t0}, 4, v{L}")
        a(f"v_lshlrev_b32 v{t1}, 2, v{t0}")
        a(f"v_and_b32 v{t2}, 15, v{L}")
        a(f"v_xor_b32 v{t1}, v{t1}, v{t2}")
        a(f"v_lshlrev_b32 v{t1}, 4, v{t1}")
        a(f"s_lshl_b32 s{S_T1}, s{S_WAVE}, 2")
        a(f"v_add_u32 v{t0}, s{S_T1}, v{t0}")
        rows_per_u = 32
    else:
        raise ValueError
    for u in range(c.NWD):
        a(f"v_add_u32 v{t2}, {rows_per_u*u}, v{t0}")
        a(f"v_mul_lo_u32 v{t2}, v{t2}, s{S_LDW}")
        a(f"v_add_u32 v{V_WD+u}, v{t2}, v{t1}")
    wmbits = int(math.log2(c.WM))
    a(f"s_and_b32 s{S_T0}, s{S_WAVE}, {c.WM-1}")
    a(f"s_lshr_b32 s{S_T1}, s{S_WAVE}, {wmbits}")
    a(f"s_and_b32 s{S_T1}, s{S_T1}, {c.WN-1}")
    if getattr(c, "M16", False):
        a(f"v_and_b32 v{t0}, 15, v{L}")
        a(f"s_mul_i32 s{S_KX}, s{S_T0}, {c.TM}")
        a(f"v_add_u32 v{t0}, s{S_KX}, v{t0}")
        a(f"v_lshlrev_b32 v{t0}, 7, v{t0}")
        a(f"v_lshrrev_b32 v{t1}, 4, v{L}")
        a(f"v_bfe_u32 v{t2}, v{L}, 1, 3")
        a(f"v_xor_b32 v{t2}, v{t2}, v{t1}")
        for hs in range(2):
            a(f"v_xor_b32 v{t3}, {4*hs}, v{t2}")
            a(f"v_lshl_add_u32 v{V_XA+hs}, v{t3}, 4, v{t0}")
        a(f"v_bfe_u32 v{t0}, v{L}, 2, 2")
        a(f"v_lshl_add_u32 v{t1}, v{t1}, 3, v{t0}")
        a(f"v_mul_u32_u24 v{t1}, {c.BN*2}, v{t1}")
        a(f"v_and_b32 v{t2}, 1, v{L}")
        a(f"v_lshl_add_u32 v{t1}, v{t2}, 3, v{t1}")
        a(f"v_add_u32 v{t1}, 0x{c.WBASE:x}, v{t1}")
        a(f"v_lshlrev_b32 v{t0}, 2, v{t0}")
        a(f"v_bfe_u32 v{t2}, v{L}, 4, 1")
        a(f"v_lshl_or_b32 v{t0}, v{t2}, 1, v{t0}")
        a(f"v_bfe_u32 v{t2}, v{L}, 1, 1")
        a(f"s_mul_i32 s{S_KX}, s{S_T1}, {c.TN//8}")
        a(f"v_add_u32 v{t2}, s{S_KX}, v{t2}")
        for nb in range(4):
            a(f"v_add_u32 v{t3}, {2*nb}, v{t2}")
            a(f"v_xor_b32 v{t3}, v{t3}, v{t0}")
            a(f"v_lshl_add_u32 v{V_XA+2+nb}, v{t3}, 4, v{t1}")
    else:
        a(f"v_and_b32 v{t0}, 31, v{L}")
        a(f"s_mul_i32 s{S_KX}, s{S_T0}, {c.TM}")
        a(f"v_add_u32 v{t0}, s{S_KX}, v{t0}")
        a(f"v_mul_lo_u32 v{V_C}, v{t0}, s{S_LDC}")
        a(f"v_lshlrev_b32 v{t0}, 7, v{t0}")
        a(f"v_lshrrev_b32 v{t1}, 5, v{L}")
        a(f"v_bfe_u32 v{t2}, v{L}, 1, 3")
        a(f"v_xor_b32 v{t2}, v{t2}, v{t1}")
        for ks in range(4):
            a(f"v_xor_b32 v{t3}, {2*ks}, v{t2}")
            a(f"v_lshl_add_u32 v{V_XA+ks}, v{t3}, 4, v{t0}")
        a(f"s_mul_i32 s{S_KX}, s{S_T1}, {c.TN*2}")
        a(f"v_lshl_add_u32 v{V_C}, v{t1}, 4, v{V_C}")
        a(f"v_add_u32 v{V_C}, s{S_KX}, v{V_C}")
        a(f"v_bfe_u32 v{t0}, v{L}, 2, 2")
        a(f"v_lshl_add_u32 v{t1}, v{t1}, 3, v{t0}")
        a(f"v_mul_u32_u24 v{t1}, {c.BN*2}, v{t1}")
        a(f"v_and_b32 v{t2}, 1, v{L}")
        a(f"v_lshl_add_u32 v{t1}, v{t2}, 3, v{t1}")
        a(f"v_add_u32 v{t1}, 0x{c.WBASE:x}, v{t1}")
        a(f"v_bfe_u32 v{t2}, v{L}, 4, 1")
        a(f"v_bfe_u32 v{t3}, v{L}, 1, 1")
        a(f"v_lshl_add_u32 v{t2}, v{t2}, 1, v{t3}")
        a(f"s_mul_i32 s{S_KX}, s{S_T1}, {c.TN//8}")
        a(f"v_add_u32 v{t2}, s{S_KX}, v{t2}")
        a(f"v_lshlrev_b32 v{t0}, 2, v{t0}")
        for nb in range(c.NBK):
            a(f"v_add_u32 v{t3}, {4*nb}, v{t2}")
            a(f"v_xor_b32 v{t3}, v{t3}, v{t0}")
            a(f"v_lshl_add_u32 v{V_WA+nb}, v{t3}, 4, v{t1}")
    a(f"s_lshl_b32 s{S_WSTEP}, s{S_LDW}, 6")
    if pfq is not None:
        s_mq, s_nq = pfq
        a(f"s_and_b32 s{S_T0}, s{S_WAVE}, 3")
        a(f"s_lshl_b32 s{S_T0}, s{S_T0}, 4")
        a(f"v_add_u32 v{t0}, s{S_T0}, v{L}")
        a(f"s_and_b32 s{S_T0}, s{s_nq}, 3")
        a(f"s_lshl_b32 s{S_T0}, s{S_T0}, 6")
        a(f"v_add_u32 v{t1}, s{S_T0}, v{t0}")
        a(f"v_mul_lo_u32 v{t1}, v{t1}, s{S_LDX}")
        a(f"s_and_b32 s{S_T0}, s{s_mq}, 3")
        a(f"s_lshl_b32 s{S_T0}, s{S_T0}, 6")
        a(f"v_add_u32 v{t0}, s{S_T0}, v{t0}")
        a(f"v_lshrrev_b32 v{t2}, 2, v{t0}")
        a(f"v_mul_lo_u32 v{t2}, v{t2}, s{S_LDW}")
        a(f"v_and_b32 v{t3}, 3, v{t0}")
        a(f"v_lshl_add_u32 v{t2}, v{t3}, 7, v{t2}")
        a(f"s_cmp_ge_u32 s{S_WAVE}, 4")
        a(f"s_cselect_b64 vcc, -1, 0")
        a(f"v_cndmask_b32 v{V_PF}, v{t1}, v{t2}, vcc")
        a(f"v_mov_b32 v{t1}, 0x7f000000")
        a(f"v_cmp_gt_u32 vcc, 16, v{L}")
        a("s_nop 1")
        a(f"v_cndmask_b32 v{V_PF}, v{t1}, v{V_PF}, vcc")
    a(f"s_mov_b32 s{S_KX}, 0")
    a(f"s_mov_b32 s{S_KW}, 0")

def xf(c, ksl, mb):
    return V_FR + (ksl * c.MBK + mb) * 4
def wf(c, ksl, nb):
    return V_FR + 2 * c.MBK * 4 + (ksl * c.NBK + nb) * 4
def acc(c, nb, mb):
    return V_ACC + (nb * c.MBK + mb) * 16

def dma_list(c, b):
    out = []
    for u in range(c.NXD):
        out.append([f"s_add_u32 m0, s{S_M0B}, 0x{b*c.XSLOT + u*8192:x}", "s_nop 0",
                    f"buffer_load_dwordx4 v{V_XD+u}, s[{S_X}:{S_X+3}], s{S_KX} offen lds"])
    for u in range(c.NWD):
        out.append([f"s_add_u32 m0, s{S_M0B}, 0x{c.WBASE + b*c.WSLOT + u*8192:x}", "s_nop 0",
                    f"buffer_load_dwordx4 v{V_WD+u}, s[{S_W}:{S_W+3}], s{S_KW} offen lds"])
    out.append([f"s_add_u32 s{S_KX}, s{S_KX}, 128", f"s_add_u32 s{S_KW}, s{S_KW}, s{S_WSTEP}"])
    return out

def pf_x():
    return [f"s_add_u32 s{S_PF}, s{S_KX}, {PD*128}", f"buffer_load_dword v{V_PFD}, v{V_PF}, s[{S_X}:{S_X+3}], s{S_PF} offen"]
def pf_w():
    return [f"s_mul_i32 s{S_PF}, s{S_WSTEP}, {PD}", f"s_add_u32 s{S_PF}, s{S_PF}, s{S_KW}", f"buffer_load_dword v{V_PFD}, v{V_PF}, s[{S_W}:{S_W+3}], s{S_PF} offen"]

def emit_dma(a, c, b):
    for g in dma_list(c, b):
        for s in g:
            a(s)

def emit_reads(a, c, b, hs):
    if c.M16:
        for nb in range(4):
            for t in range(2):
                off = b * c.WSLOT + (hs * 32 + t * 4) * c.BN * 2
                a(f"ds_read_b64_tr_b16 {vr(V_FR+32+nb*4+2*t,2)}, v{V_XA+2+nb} offset:{off}")
        for mb in range(8):
            a(f"ds_read_b128 {vr(V_FR+mb*4,4)}, v{V_XA+hs} offset:{b*c.XSLOT + mb*2048}")
        return
    for ksl in range(2):
        ks = 2 * hs + ksl
        for nb in range(c.NBK):
            for t in range(2):
                off = b * c.WSLOT + (ks * 16 + t * 4) * c.BN * 2
                a(f"ds_read_b64_tr_b16 {vr(wf(c,ksl,nb)+2*t,2)}, v{V_WA+nb} offset:{off}")
        for mb in range(c.MBK):
            off = b * c.XSLOT + mb * 4096
            a(f"ds_read_b128 {vr(xf(c,ksl,mb),4)}, v{V_XA+ks} offset:{off}")

def mfma_list(c):
    out = []
    if c.M16:
        for mb in range(8):
            for nb in range(4):
                d = vr(V_ACC + (nb * 8 + mb) * 4, 4)
                out.append(f"v_mfma_f32_16x16x32_bf16 {d}, {vr(V_FR+32+nb*4,4)}, {vr(V_FR+mb*4,4)}, {d}")
        return out
    for ksl in range(2):
        for mb in range(c.MBK):
            for nb in range(c.NBK):
                d = vr(acc(c, nb, mb), 16)
                out.append(f"v_mfma_f32_32x32x16_bf16 {d}, {vr(wf(c,ksl,nb),4)}, {vr(xf(c,ksl,mb),4)}, {d}")
    return out

import os
PROF = os.environ.get("GPROF")
def stamp(a, idx):
    if not PROF: return
    a(f"s_memtime s[{80+2*idx}:{81+2*idx}]")
    if idx == 0:
        a("s_memrealtime s[90:91]")
    if idx == 3:
        a("s_memrealtime s[92:93]")
def dump_stamps(a, n, wgsel, kidx=0):
    if not PROF: return
    lab = a.newlabel("nodump")
    a("s_waitcnt lgkmcnt(0)")
    a(f"s_cmp_eq_u32 s2, {wgsel}")
    a(f"s_cbranch_scc0 {lab}")
    make_srd(a, 96, D_WS, WS_SIZE - 4096 + kidx*512, None, WS_SIZE)
    a(f"s_lshl_b32 s94, s{S_WAVE}, 5")
    a("v_mov_b32 v17, s94")
    for i in range(n):
        a(f"s_sub_u32 s95, s{80+2*i}, s80")
        a("v_mov_b32 v18, s95")
        a(f"buffer_store_dword v18, v17, s[96:99], 0 offen offset:{4*i}")
    a("s_sub_u32 s95, s92, s90")
    a("v_mov_b32 v18, s95")
    a(f"buffer_store_dword v18, v17, s[96:99], 0 offen offset:{4*n}")
    a.label(lab)

def interleave(a, ml, groups, every, first=0):
    gi = 0
    for i, m in enumerate(ml):
        a(m)
        if i >= first and (i - first) % every == 0 and gi < len(groups):
            for s in groups[gi]:
                a(s)
            gi += 1
    assert gi == len(groups), (gi, len(groups))

def guarded(a, c, add, body_yes, body_no):
    sk = a.newlabel("skip")
    done = a.newlabel("done")
    a(f"s_add_u32 s{S_T0}, s{S_CNT}, {add}")
    a(f"s_cmp_lt_u32 s{S_T0}, s{S_NS}")
    a(f"s_cbranch_scc0 {sk}")
    body_yes()
    a(f"s_branch {done}")
    a.label(sk)
    body_no()
    a.label(done)

def gemm_main(a, c, tag, epilogue=None, post_dma0=None, npost=0):
    stamp(a, 0)
    NDMA = c.NXD + c.NWD
    Lg1 = f"L_{tag}_g1"
    Lepi = f"L_{tag}_epi"
    ml = mfma_list(c)
    nm = len(ml)
    def split(dl):
        return dl[:-1], dl[-1]
    emit_dma(a, c, 0)
    if post_dma0 is not None:
        post_dma0()
    for i in range(c.NBK * c.MBK * 16):
        a(f"v_mov_b32 v{V_ACC+i}, 0")
    a(f"s_mov_b32 s{S_CNT}, 0")
    a(f"s_cmp_ge_u32 s{S_WAVE}, 4")
    a(f"s_cbranch_scc1 {Lg1}")
    n1 = NDMA // 2
    n0 = (NDMA - n1 + 1) // 2
    n2 = NDMA - n1 - n0
    a(f"s_waitcnt vmcnt({npost})")
    a("s_barrier")
    stamp(a, 1)
    Ll = f"L_{tag}_g0loop"
    a.label(Ll)
    for b in range(2):
        dg, adv = split(dma_list(c, 1 - b))
        def with_dma():
            emit_reads(a, c, b, 0)
            for g in dg[:n0]:
                for s in g: a(s)
            a("s_waitcnt lgkmcnt(0)")
            a("s_barrier")
            interleave(a, ml, dg[n0:n0+n1], nm // n1, 1)
            a("s_barrier")
            emit_reads(a, c, b, 1)
            for g in dg[n0+n1:]:
                for s in g: a(s)
            for s in pf_x(): a(s)
            for s in adv: a(s)
            a("s_waitcnt lgkmcnt(0)")
            a("s_barrier")
        def without_dma():
            emit_reads(a, c, b, 0)
            a("s_waitcnt lgkmcnt(0)")
            a("s_barrier")
            for m in ml: a(m)
            a("s_barrier")
            emit_reads(a, c, b, 1)
            a("s_waitcnt lgkmcnt(0)")
            a("s_barrier")
        if b == 0:
            with_dma()
        else:
            guarded(a, c, 2, with_dma, without_dma)
        for m in ml:
            a(m)
        a("s_waitcnt vmcnt(1)")
        a("s_barrier")
    a(f"s_add_u32 s{S_CNT}, s{S_CNT}, 2")
    a(f"s_cmp_lt_u32 s{S_CNT}, s{S_NS}")
    a(f"s_cbranch_scc1 {Ll}")
    a(f"s_branch {Lepi}")
    h1 = NDMA // 2
    a.label(Lg1)
    dg, adv = split(dma_list(c, 1))
    for g in dg[:h1]:
        for s in g: a(s)
    a(f"s_waitcnt vmcnt({h1+npost})")
    a("s_barrier")
    a("s_barrier")
    stamp(a, 1)
    Ll = f"L_{tag}_g1loop"
    a.label(Ll)
    for b in range(2):
        emit_reads(a, c, b, 0)
        a("s_waitcnt lgkmcnt(0)")
        a("s_barrier")
        dg, adv = split(dma_list(c, 1 - b))
        def c0_yes():
            interleave(a, ml, dg[h1:] + [pf_w() + adv], nm // (NDMA - h1 + 1), 0)
        def c0_no():
            for m in ml: a(m)
        if b == 0:
            c0_yes()
        else:
            guarded(a, c, 2, c0_yes, c0_no)
        a("s_barrier")
        emit_reads(a, c, b, 1)
        a("s_waitcnt vmcnt(1) lgkmcnt(0)")
        a("s_barrier")
        dg2, adv2 = split(dma_list(c, b))
        def c1_yes():
            interleave(a, ml, dg2[:h1], nm // h1, 1)
        guarded(a, c, 2 + b, c1_yes, c0_no)
        if b == 0:
            a("s_barrier")
    a(f"s_add_u32 s{S_CNT}, s{S_CNT}, 2")
    a(f"s_cmp_lt_u32 s{S_CNT}, s{S_NS}")
    a(f"s_cbranch_scc0 {Lepi}")
    a("s_barrier")
    a(f"s_branch {Ll}")
    a.label(Lepi)
    stamp(a, 2)
    if epilogue is not None:
        epilogue(a, c)
    else:
        gemm_epilogue(a, c)
    if PROF:
        a("s_waitcnt vmcnt(0)")
    stamp(a, 3)
    dump_stamps(a, 4, int(PROF) if PROF else 0)

def gemm_epilogue(a, c):
    assert c.TN == 64
    L = V_LANE
    t0, t1, t2 = V_T, V_T + 1, V_T + 2
    VW, VR, VG = V_XD, V_XD + 1, V_XD + 2
    region = c.TM * 128
    a(f"s_mul_i32 s{S_T0}, s{S_WAVE}, {region}")
    a(f"v_and_b32 v{t0}, 31, v{L}")
    a(f"v_lshlrev_b32 v{VW}, 7, v{t0}")
    a(f"v_add_u32 v{VW}, s{S_T0}, v{VW}")
    a(f"v_lshrrev_b32 v{t1}, 5, v{L}")
    a(f"v_and_b32 v{t2}, 7, v{L}")
    a(f"v_xor_b32 v{t1}, v{t1}, v{t2}")
    a(f"v_lshlrev_b32 v{VR}, 4, v{L}")
    a(f"v_add_u32 v{VR}, s{S_T0}, v{VR}")
    wmbits = int(math.log2(c.WM))
    a(f"s_and_b32 s{S_T0}, s{S_WAVE}, {c.WM-1}")
    a(f"s_mul_i32 s{S_T0}, s{S_T0}, {c.TM}")
    a(f"s_lshr_b32 s{S_T1}, s{S_WAVE}, {wmbits}")
    a(f"s_mul_i32 s{S_T1}, s{S_T1}, {c.TN*2}")
    a(f"v_lshrrev_b32 v{t0}, 3, v{L}")
    a(f"v_xor_b32 v{t2}, v{t2}, v{t0}")
    a(f"v_add_u32 v{t0}, s{S_T0}, v{t0}")
    a(f"v_mul_lo_u32 v{VG}, v{t0}, s{S_LDC}")
    a(f"v_lshl_add_u32 v{VG}, v{t2}, 4, v{VG}")
    a(f"v_add_u32 v{VG}, s{S_T1}, v{VG}")
    if c.M16:
        a(f"s_mul_i32 s{S_T0}, s{S_WAVE}, {region}")
        a(f"v_and_b32 v{t0}, 15, v{L}")
        a(f"v_lshlrev_b32 v{VW}, 7, v{t0}")
        a(f"v_add_u32 v{VW}, s{S_T0}, v{VW}")
        a(f"v_bfe_u32 v{t0}, v{L}, 4, 1")
        a(f"v_lshl_add_u32 v{VW}, v{t0}, 3, v{VW}")
        a(f"v_lshrrev_b32 v{t1}, 5, v{L}")
        a(f"v_and_b32 v{t2}, 7, v{L}")
        a(f"v_xor_b32 v{t1}, v{t1}, v{t2}")
        WA = V_XA
        for nb in range(4):
            a(f"v_xor_b32 v{t0}, {2*nb}, v{t1}")
            a(f"v_lshl_add_u32 v{WA+nb}, v{t0}, 4, v{VW}")
        a("s_nop 7")
        T = V_FR
        k = 0
        for mb in range(8):
            for nb in range(4):
                A0 = V_ACC + (nb * 8 + mb) * 4
                t = T + (k % 8) * 2
                k += 1
                for i in range(4):
                    a(f"v_mul_f32 v{A0+i}, s{S_SCALE}, v{A0+i}")
                a(f"v_cvt_pk_bf16_f32 v{t}, v{A0}, v{A0+1}")
                a(f"v_cvt_pk_bf16_f32 v{t+1}, v{A0+2}, v{A0+3}")
                a(f"ds_write_b64 v{WA+nb}, {vr(t,2)} offset:{mb*2048}")
    WA = V_XA
    for cb in range(4 if not c.M16 else 0):
        a(f"v_xor_b32 v{t0}, {2*cb}, v{t1}")
        a(f"v_lshl_add_u32 v{WA+cb}, v{t0}, 4, v{VW}")
    a("s_nop 7")
    T = V_FR
    k = 0
    for mb in range(c.MBK if not c.M16 else 0):
        for nb in range(c.NBK):
            A0 = acc(c, nb, mb)
            t = T + (k % 4) * 8
            k += 1
            for i in range(16):
                a(f"v_mul_f32 v{A0+i}, s{S_SCALE}, v{A0+i}")
            for q in range(4):
                a(f"v_cvt_pk_bf16_f32 v{t+2*q}, v{A0+4*q}, v{A0+4*q+1}")
                a(f"v_cvt_pk_bf16_f32 v{t+2*q+1}, v{A0+4*q+2}, v{A0+4*q+3}")
            a("s_nop 1")
            for q in (0, 2):
                a(f"v_permlane32_swap_b32 v{t+2*q}, v{t+2*q+2}")
                a(f"v_permlane32_swap_b32 v{t+2*q+1}, v{t+2*q+3}")
            for q in (0, 2):
                a(f"ds_write_b128 v{WA + nb*2 + q//2}, {vr(t+2*q,4)} offset:{mb*4096}")
    a("s_waitcnt lgkmcnt(0)")
    nst = c.TM // 8
    R = V_ACC
    for kk in range(nst):
        a(f"ds_read_b128 {vr(R+4*kk,4)}, v{VR} offset:{kk*1024}")
    a(f"s_lshl_b32 s{S_T1}, s{S_LDC}, 3")
    a(f"s_mov_b32 s{S_T0}, 0")
    for kk in range(nst):
        a(f"s_waitcnt lgkmcnt({min(nst-1-kk,15)})")
        a(f"buffer_store_dwordx4 {vr(R+4*kk,4)}, v{VG}, s[{S_C}:{S_C+3}], s{S_T0} offen")
        if kk + 1 < nst:
            a(f"s_add_u32 s{S_T0}, s{S_T0}, s{S_T1}")
```

```python
from common import *
import gemm
import os
from gemm import (V_PF, V_PFD, S_PF, S_X, S_W, S_C, S_LDX, S_LDW, S_LDC, S_NS, S_SCALE, S_WAVE, S_KX, S_KW, S_WSTEP, S_CNT, S_M0B, S_T0, S_T1,
                  V_LANE, V_XD, V_WD, V_XA, V_WA, V_C, V_T, interleave)

class Cfg5:
    def __init__(self):
        self.BM, self.BN, self.WM, self.WN = 128, 128, 2, 2
        self.TM, self.TN = 64, 64
        self.MBK, self.NBK = 2, 2
        self.XSLOT = 128 * 128
        self.WSLOT = 64 * 128 * 2
        self.WBASE = 4 * self.XSLOT
        self.LDS = 4 * (self.XSLOT + self.WSLOT)
        self.NXD, self.NWD = 2, 2

V_FR = 24
V_ACC = 128
def xf(ks, mb): return V_FR + (ks * 2 + mb) * 4
def wf(ks, nb): return V_FR + 32 + (ks * 2 + nb) * 4
def acc(nb, mb): return V_ACC + (nb * 2 + mb) * 16

def dma_list(c, b, group=None):
    out = []
    for u in range(c.NXD):
        out.append([f"s_add_u32 m0, s{S_M0B}, 0x{b*c.XSLOT + u*8192:x}", "s_nop 0",
                    f"buffer_load_dwordx4 v{V_XD+u}, s[{S_X}:{S_X+3}], s{S_KX} offen lds"])
    for u in range(c.NWD):
        out.append([f"s_add_u32 m0, s{S_M0B}, 0x{c.WBASE + b*c.WSLOT + u*8192:x}", "s_nop 0",
                    f"buffer_load_dwordx4 v{V_WD+u}, s[{S_W}:{S_W+3}], s{S_KW} offen lds"])
    out[-1] = out[-1] + (pf(group) if (group is not None and USE_PF) else []) + [f"s_add_u32 s{S_KX}, s{S_KX}, 128", f"s_add_u32 s{S_KW}, s{S_KW}, s{S_WSTEP}"]
    return out

PD5 = int(os.environ.get("PD5", "3"))
USE_PF = False
def pf_setup(a, s_mq, s_nq):
    t0, t1, t2, t3 = V_T, V_T + 1, V_T + 2, V_T + 3
    L = V_LANE
    a(f"s_and_b32 s{S_T0}, s{S_WAVE}, 3")
    a(f"s_and_b32 s{S_T1}, s{s_nq}, 7")
    a(f"s_lshl_b32 s{S_T1}, s{S_T1}, 4")
    a(f"s_lshl_b32 s{S_PF}, s{S_T0}, 2")
    a(f"s_add_u32 s{S_T1}, s{S_T1}, s{S_PF}")
    a(f"v_add_u32 v{t1}, s{S_T1}, v{L}")
    a(f"v_mul_lo_u32 v{t1}, v{t1}, s{S_LDX}")
    a(f"s_and_b32 s{S_T1}, s{s_mq}, 3")
    a(f"s_lshl_b32 s{S_T1}, s{S_T1}, 5")
    a(f"s_lshl_b32 s{S_PF}, s{S_T0}, 3")
    a(f"s_add_u32 s{S_T1}, s{S_T1}, s{S_PF}")
    a(f"v_add_u32 v{t0}, s{S_T1}, v{L}")
    a(f"v_lshrrev_b32 v{t2}, 1, v{t0}")
    a(f"v_mul_lo_u32 v{t2}, v{t2}, s{S_LDW}")
    a(f"v_and_b32 v{t3}, 1, v{t0}")
    a(f"v_lshl_add_u32 v{t2}, v{t3}, 7, v{t2}")
    a(f"s_cmp_ge_u32 s{S_WAVE}, 4")
    a(f"s_cselect_b64 vcc, -1, 0")
    a(f"v_cndmask_b32 v{V_PF}, v{t1}, v{t2}, vcc")
    a(f"s_cselect_b32 s{S_T1}, 8, 4")
    a(f"v_mov_b32 v{t1}, 0x7f000000")
    a(f"v_cmp_gt_u32 vcc, s{S_T1}, v{L}")
    a("s_nop 1")
    a(f"v_cndmask_b32 v{V_PF}, v{t1}, v{V_PF}, vcc")
def pf(group):
    if group == 0:
        return [f"s_add_u32 s{S_PF}, s{S_KX}, {PD5*128}", f"buffer_load_dword v{V_PFD}, v{V_PF}, s[{S_X}:{S_X+3}], s{S_PF} offen"]
    return [f"s_mul_i32 s{S_PF}, s{S_WSTEP}, {PD5}", f"s_add_u32 s{S_PF}, s{S_PF}, s{S_KW}", f"buffer_load_dword v{V_PFD}, v{V_PF}, s[{S_W}:{S_W+3}], s{S_PF} offen"]

def reads(a, c, b):
    for ks in range(4):
        for nb in range(2):
            for t in range(2):
                off = b * c.WSLOT + (ks * 16 + t * 4) * c.BN * 2
                a(f"ds_read_b64_tr_b16 {vr(wf(ks,nb)+2*t,2)}, v{V_WA+nb} offset:{off}")
        for mb in range(2):
            a(f"ds_read_b128 {vr(xf(ks,mb),4)}, v{V_XA+ks} offset:{b*c.XSLOT + mb*4096}")

def mfmas():
    out = []
    for ks in range(4):
        for mb in range(2):
            for nb in range(2):
                d = vr(acc(nb, mb), 16)
                out.append(f"v_mfma_f32_32x32x16_bf16 {d}, {vr(wf(ks,nb),4)}, {vr(xf(ks,mb),4)}, {d}")
    return out

def cond(a, add, yes, no):
    sk = a.newlabel("n"); dn = a.newlabel("d")
    a(f"s_add_u32 s{S_T0}, s{S_CNT}, {add}")
    a(f"s_cmp_lt_u32 s{S_T0}, s{S_NS}")
    a(f"s_cbranch_scc0 {sk}")
    yes()
    a(f"s_branch {dn}")
    a.label(sk)
    no()
    a.label(dn)

def main(a, c, tag):
    ml = mfmas()
    Lg1, Lepi = f"L_{tag}_g1", f"L_{tag}_epi"
    def emit(groups):
        for g in groups:
            for s in g: a(s)
    for b in range(3):
        emit(dma_list(c, b, 0))
    for i in range(64):
        a(f"v_mov_b32 v{V_ACC+i}, 0")
    a(f"s_mov_b32 s{S_CNT}, 0")
    a(f"s_waitcnt vmcnt({10 if USE_PF else 8})")
    a("s_barrier")
    a(f"s_cmp_ge_u32 s{S_WAVE}, 4")
    a(f"s_cbranch_scc1 {Lg1}")
    def Lphase(b):
        dg = dma_list(c, (b + 3) % 4, b & 1)
        def y():
            reads(a, c, b); emit(dg); a(f"s_waitcnt vmcnt({10 if USE_PF else 8}) lgkmcnt(0)")
        def n():
            reads(a, c, b); a("s_waitcnt vmcnt(0) lgkmcnt(0)")
        cond(a, 3, y, n)
        a("s_barrier")
        a(f"s_add_u32 s{S_CNT}, s{S_CNT}, 1")
    def Cphase(bt):
        dg = dma_list(c, (bt + 3) % 4, (bt & 1) ^ 1)
        def y():
            interleave(a, ml, dg, 4, 1); a(f"s_waitcnt vmcnt({10 if USE_PF else 8})")
        def n():
            for m in ml: a(m)
            a("s_waitcnt vmcnt(0)")
        cond(a, 3, y, n)
        a("s_barrier")
        a(f"s_add_u32 s{S_CNT}, s{S_CNT}, 1")
    Ll = f"L_{tag}_g0loop"
    a.label(Ll)
    for b in (0, 2):
        Lphase(b)
        Cphase(b + 1)
        a(f"s_cmp_ge_u32 s{S_CNT}, s{S_NS}")
        a(f"s_cbranch_scc1 L_{tag}_g0end")
    a(f"s_branch {Ll}")
    a.label(f"L_{tag}_g0end")
    a("s_barrier")
    a(f"s_branch {Lepi}")
    a.label(Lg1)
    emit(dma_list(c, 3, 1))
    a(f"s_waitcnt vmcnt({10 if USE_PF else 8})")
    a("s_barrier")
    a(f"s_add_u32 s{S_CNT}, s{S_CNT}, 1")
    Ll = f"L_{tag}_g1loop"
    a.label(Ll)
    for b in (1, 3):
        Lphase(b)
        Cphase((b + 1) % 4)
        a(f"s_cmp_gt_u32 s{S_CNT}, s{S_NS}")
        a(f"s_cbranch_scc1 {Lepi}")
    a(f"s_branch {Ll}")

def inwg_reduce(a):
    t0 = V_T
    a(f"s_lshl_b32 s{S_T0}, s{S_WAVE}, 13")
    a(f"v_lshlrev_b32 v{t0}, 4, v{V_LANE}")
    a(f"v_add_u32 v{t0+1}, s{S_T0}, v{t0}")
    a(f"s_xor_b32 s{S_T0}, s{S_T0}, 0x8000")
    a(f"v_add_u32 v{t0+2}, s{S_T0}, v{t0}")
    a("s_nop 7")
    a("s_nop 3")
    l1 = a.newlabel("r1"); l2 = a.newlabel("r2")
    a(f"s_cmp_ge_u32 s{S_WAVE}, 4")
    a(f"s_cbranch_scc1 {l1}")
    for i in range(8):
        a(f"ds_write_b128 v{t0+1}, {vr(V_ACC+32+4*i,4)} offset:{i*1024}")
    for i in range(32):
        a(f"v_mov_b32 v{96+i}, v{V_ACC+i}")
    a(f"s_branch {l2}")
    a.label(l1)
    for i in range(8):
        a(f"ds_write_b128 v{t0+1}, {vr(V_ACC+4*i,4)} offset:{i*1024}")
    for i in range(32):
        a(f"v_mov_b32 v{96+i}, v{V_ACC+32+i}")
    a.label(l2)
    a("s_waitcnt lgkmcnt(0)")
    a("s_barrier")
    for i in range(8):
        a(f"ds_read_b128 {vr(24+4*i,4)}, v{t0+2} offset:{i*1024}")
    a("s_waitcnt lgkmcnt(0)")
    for i in range(32):
        a(f"v_add_f32 v{96+i}, v{96+i}, v{24+i}")
```

```python
from common import *
from gemm import *
import os

def tile_decode(a, NT, s_t, s_m, s_n, s_tmp):
    a(f"s_and_b32 s{s_tmp}, s{s_t}, 7")
    a(f"s_lshr_b32 s{s_t}, s{s_t}, 3")
    a(f"s_and_b32 s{s_m}, s{s_tmp}, 1")
    a(f"s_lshl_b32 s{s_m}, s{s_m}, 2")
    a(f"s_and_b32 s{s_n}, s{s_t}, 3")
    a(f"s_add_u32 s{s_m}, s{s_m}, s{s_n}")
    a(f"s_lshr_b32 s{s_tmp}, s{s_tmp}, 1")
    a(f"s_mul_i32 s{s_tmp}, s{s_tmp}, {NT//4}")
    a(f"s_lshr_b32 s{s_n}, s{s_t}, 2")
    a(f"s_add_u32 s{s_n}, s{s_n}, s{s_tmp}")

import gemm5
def gen_k1(a):
    name = "k1_proj_kernel"
    kernel_header(a, name)
    c = GemmCfg(256, 256, 2, 4)
    c.M16 = os.environ.get('M16', '1') == '1'
    c5 = gemm5.Cfg5()
    tl_start(a)
    load_ptrs(a)
    probs = [
        ("qb", 0,   16, IN_B_X,   2048*1024*2, 1024, IN_B_WQ,  1024*4096*2, 4096, 1024, WS_QB, 4096, SCALE_B),
        ("kb", 128, 16, IN_B_CKV, 2048*512*2,  512,  IN_B_WUK, 512*4096*2,  4096, 512,  WS_KB, 4096, 1.0),
        ("vb", 256, 16, IN_B_CKV, 2048*512*2,  512,  IN_B_WUV, 512*4096*2,  4096, 512,  WS_VB, 4096, 1.0),
    ]
    NWG = 544
    a(f"s_cmp_ge_u32 s2, {NWG}")
    a("s_cbranch_scc1 L_k1_end")
    a("s_waitcnt lgkmcnt(0)")
    a(f"s_cmp_ge_u32 s2, 512")
    a("s_cbranch_scc1 L_k1_kva")
    a(f"s_cmp_ge_u32 s2, 384")
    a("s_cbranch_scc1 L_k1_qa")
    for i, p in enumerate(probs):
        if i + 1 < len(probs):
            a(f"s_cmp_lt_u32 s2, {probs[i+1][1]}")
            a(f"s_cbranch_scc1 L_k1_{p[0]}")
        else:
            a(f"s_branch L_k1_{p[0]}")
    for p in probs:
        nm, first, NT, xs, xsz, ldx, wsl, wsz, ldw, K, coff, ldc, scale = p
        a.label(f"L_k1_{nm}")
        a(f"s_sub_u32 s60, s2, {first}")
        tile_decode(a, NT, 60, 61, 62, 63)
        a(f"s_mul_i32 s63, s61, {256*ldx*2}")
        make_srd(a, S_X, xs, 0, 63, xsz)
        a(f"s_mul_i32 s63, s62, {256*2}")
        make_srd(a, S_W, wsl, 0, 63, wsz)
        a(f"s_mul_i32 s63, s61, {256*ldc*2}")
        a(f"s_mul_i32 s60, s62, {256*2}")
        a(f"s_add_u32 s63, s63, s60")
        make_srd(a, S_C, D_WS, coff, 63, coff + 2048*ldc*2)
        a(f"s_mov_b32 s{S_LDX}, {ldx*2}")
        a(f"s_mov_b32 s{S_LDW}, {ldw*2}")
        a(f"s_mov_b32 s{S_LDC}, {ldc*2}")
        a(f"s_mov_b32 s{S_NS}, {K//64}")
        a(f"s_mov_b32 s{S_SCALE}, 0x{f32bits(scale):x}")
        a("s_branch L_k1_gemm")
    a.label("L_k1_gemm")
    gemm_setup(a, c, (61, 62))
    def touches():
        a("s_sub_u32 s64, s2, 128")
        a("s_cmp_lt_u32 s64, 256")
        a("s_cselect_b32 s64, s64, 0")
        a("s_cselect_b32 s65, 0, 0x7f000000")
        a("v_lshlrev_b32 v120, 4, v0")
        a("v_add_u32 v120, s65, v120")
        for slot, nbytes in ((IN_A_X, 2048*1024*2), (IN_A_WQ, 1024*1024*2)):
            per = nbytes // 256
            a(f"s_mul_i32 s72, s64, {per}")
            make_srd(a, 68, slot, 0, 72, nbytes)
            for i in range(per // 8192):
                a(f"s_mov_b32 s72, {i*8192}")
                a(f"buffer_load_dwordx4 v[124:127], v120, s[68:71], s72 offen")
        a("s_and_b32 s64, s64, 7")
        for slot in (IN_A_WK, IN_A_WV):
            a(f"s_lshl_b32 s72, s64, 13")
            make_srd(a, 68, slot, 0, 72, 65536)
            a(f"buffer_load_dwordx4 v[124:127], v120, s[68:71], 0 offen")
    gemm_main(a, c, "k1", post_dma0=touches, npost=5)
    a("s_branch L_k1_end")
    a.label("L_k1_qa")
    a("s_sub_u32 s60, s2, 384")
    a("s_and_b32 s63, s60, 7")
    a("s_lshr_b32 s60, s60, 3")
    a("s_lshr_b32 s61, s63, 1")
    a("s_lshl_b32 s61, s61, 2")
    a("s_and_b32 s62, s60, 3")
    a("s_add_u32 s61, s61, s62")
    a("s_and_b32 s62, s63, 1")
    a("s_lshl_b32 s62, s62, 2")
    a("s_lshr_b32 s60, s60, 2")
    a("s_add_u32 s62, s62, s60")
    a(f"s_mul_i32 s63, s61, {128*1024*2}")
    make_srd(a, S_X, IN_A_X, 0, 63, 2048*1024*2)
    a(f"s_mul_i32 s63, s62, {128*2}")
    make_srd(a, S_W, IN_A_WQ, 0, 63, 1024*1024*2)
    a(f"s_mul_i32 s63, s61, {128*1024*2}")
    a(f"s_mul_i32 s60, s62, {128*2}")
    a(f"s_add_u32 s63, s63, s60")
    make_srd(a, S_C, D_WS, WS_QA, 63, WS_QA + 2048*1024*2)
    a(f"s_mov_b32 s{S_LDX}, 2048")
    a(f"s_mov_b32 s{S_LDW}, 2048")
    a(f"s_mov_b32 s{S_LDC}, 2048")
    a(f"s_mov_b32 s{S_NS}, 16")
    a(f"s_mov_b32 s{S_SCALE}, 0x{f32bits(SCALE_A):x}")
    gemm_setup(a, c5)
    gemm5.pf_setup(a, 61, 62)
    gemm5.main(a, c5, "k1q")
    a.label("L_k1q_epi")
    gemm5.inwg_reduce(a)
    for i in range(32):
        a(f"v_mul_f32 v{96+i}, s{S_SCALE}, v{96+i}")
    a(f"s_lshr_b32 s60, s{S_WAVE}, 2")
    a(f"s_lshl_b32 s60, s60, 6")
    a(f"s_add_u32 s61, s60, {32*2048}")
    import k3
    k3.store_block(a, 96, 60)
    k3.store_block(a, 112, 61)
    a("s_branch L_k1_end")

    a.label("L_k1_kva")
    stamp(a, 0)
    a("v_and_b32 v1, 63, v0")
    a("v_lshrrev_b32 v2, 6, v0")
    a("s_nop 0")
    a("v_readfirstlane_b32 s21, v2")
    a("s_nop 3")
    make_srd(a, 4, IN_A_X, 0, None, 2048*1024*2)
    make_srd(a, 8, IN_A_WK, 0, None, 1024*32*2)
    make_srd(a, 12, IN_A_WV, 0, None, 1024*32*2)
    make_srd(a, 16, D_WS, WS_KA, None, WS_KA + 2048*32*2)
    make_srd(a, 64, D_WS, WS_VA, None, WS_VA + 2048*32*2)
    a("v_lshlrev_b32 v2, 4, v1")
    a("s_lshl_b32 s22, s21, 13")
    for u in range(8):
        a(f"s_add_u32 s23, s22, {u*1024}")
        a(f"s_mov_b32 m0, s23")
        a("s_nop 0")
        a(f"buffer_load_dwordx4 v2, s[8:11], s23 offen lds")
        a(f"s_add_u32 m0, s23, 0x10000")
        a("s_nop 0")
        a(f"buffer_load_dwordx4 v2, s[12:15], s23 offen lds")
    a("s_sub_u32 s23, s2, 512")
    a("s_lshl_b32 s23, s23, 6")
    a("s_and_b32 s24, s21, 1")
    a("s_lshl_b32 s24, s24, 5")
    a("s_add_u32 s23, s23, s24")
    a("s_lshr_b32 s25, s21, 1")
    a("v_and_b32 v3, 31, v1")
    a("v_add_u32 v3, s23, v3")
    a("v_lshrrev_b32 v4, 5, v1")
    a("v_lshlrev_b32 v5, 11, v3")
    a("v_lshl_add_u32 v5, v4, 4, v5")
    a("s_lshl_b32 s26, s25, 9")
    a("v_lshlrev_b32 v6, 6, v3")
    a("v_lshl_add_u32 v6, v4, 4, v6")
    a("v_bfe_u32 v7, v1, 2, 2")
    a("v_lshl_add_u32 v7, v4, 3, v7")
    a("v_lshlrev_b32 v7, 6, v7")
    a("v_bfe_u32 v8, v1, 4, 1")
    a("v_lshl_add_u32 v7, v8, 5, v7")
    a("v_and_b32 v8, 3, v1")
    a("v_lshl_add_u32 v7, v8, 3, v7")
    a("s_lshl_b32 s27, s25, 14")
    a("v_add_u32 v7, s27, v7")
    a("v_add_u32 v8, 0x10000, v7")
    XR = 64
    for i in range(16):
        a(f"buffer_load_dwordx4 {vr(XR + i*4, 4)}, v5, s[4:7], s26 offen offset:{i*32}")
    a("s_waitcnt vmcnt(16)")
    a("s_barrier")
    stamp(a, 1)
    WF = 128
    AK, AV = 16, 32
    for ks in range(16):
        base = WF + ks * 8
        for t in range(2):
            a(f"ds_read_b64_tr_b16 {vr(base+2*t,2)}, v7 offset:{ks*1024+t*256}")
        for t in range(2):
            a(f"ds_read_b64_tr_b16 {vr(base+4+2*t,2)}, v8 offset:{ks*1024+t*256}")
        if ks % 3 == 2:
            a("s_waitcnt lgkmcnt(4)")
    a("s_waitcnt vmcnt(0) lgkmcnt(0)")
    a("s_barrier")
    stamp(a, 2)
    for ks in range(16):
        base = WF + ks * 8
        x = vr(XR + ks*4, 4)
        cK = vr(AK,16) if ks else "0"
        cV = vr(AV,16) if ks else "0"
        a(f"v_mfma_f32_32x32x16_bf16 {vr(AK,16)}, {vr(base,4)}, {x}, {cK}")
        a(f"v_mfma_f32_32x32x16_bf16 {vr(AV,16)}, {x}, {vr(base+4,4)}, {cV}")
    a("s_nop 15")
    a("s_nop 3")
    a("v_add_u32 v9, s22, v2")
    for i in range(8):
        a(f"ds_write_b128 v9, {vr(AK+4*i,4)} offset:{i*1024}")
    a("s_waitcnt lgkmcnt(0)")
    a("s_barrier")
    stamp(a, 3)
    import gemm as _g
    if _g.PROF:
        _g.dump_stamps(a, 4, int(_g.PROF), 1)
    a("s_cmp_eq_u32 s25, 0")
    a("s_cbranch_scc0 L_k1_end")
    for q in range(1, 4):
        for i in range(8):
            a(f"ds_read_b128 {vr(64+(q-1)*32+4*i,4)}, v9 offset:{q*16384+i*1024}")
    a("s_waitcnt lgkmcnt(0)")
    for i in range(32):
        a(f"v_add_f32 v{64+i}, v{64+i}, v{96+i}")
        a(f"v_add_f32 v{AK+i}, v{AK+i}, v{128+i}")
    for i in range(32):
        a(f"v_add_f32 v{AK+i}, v{AK+i}, v{64+i}")
    for (A0, srd, t) in ((AK, 16, 48),):
        for q in range(4):
            a(f"v_cvt_pk_bf16_f32 v{t+2*q}, v{A0+4*q}, v{A0+4*q+1}")
            a(f"v_cvt_pk_bf16_f32 v{t+2*q+1}, v{A0+4*q+2}, v{A0+4*q+3}")
        a("s_nop 1")
        for q in (0, 2):
            a(f"v_permlane32_swap_b32 v{t+2*q}, v{t+2*q+2}")
            a(f"v_permlane32_swap_b32 v{t+2*q+1}, v{t+2*q+3}")
        for q in (0, 2):
            a(f"buffer_store_dwordx4 {vr(t+2*q,4)}, v6, s[{srd}:{srd+3}], 0 offen offset:{q*16}")
    a("v_and_b32 v3, 31, v1")
    a("v_lshlrev_b32 v3, 12, v3")
    a("v_lshl_add_u32 v3, v4, 4, v3")
    a("s_lshl_b32 s23, s23, 1")
    for i in range(8):
        a(f"v_cvt_pk_bf16_f32 v{56+i}, v{AV+2*i}, v{AV+2*i+1}")
    for gi in range(2):
        a(f"buffer_store_dwordx4 {vr(56+4*gi,4)}, v3, s[64:67], s23 offen offset:{gi*32}")
    a.label("L_k1_end")
    tl_end(a, 0)
    a("s_endpgm")
    return name, (NWG, 512, max(c.LDS, c5.LDS))
```

```python
from common import *

NEG_BIG = -1.0e30
THR = float(2.0 ** 60)

SQ, SK, SV, SO = 4, 8, 12, 16
S_W, S_G, S_WG, S_I, S_N0, S_T, S_KVT, S_QMIN = 20, 21, 22, 23, 24, 25, 26, 27
S_ACT, S_ACTP, S_MSK, S_KM0, S_VM0, S_T0, S_T1, S_THR = 28, 29, 30, 31, 60, 61, 62, 63
S_HOFF, S_QB, S_NEGBIG, S_T2 = 64, 65, 66, 67
V_L = 1
V_SUM2 = 27
V_KD, V_VD = 2, 3
V_KA, V_VA = 4, 12
V_M, V_LS, V_SUM = 16, 17, 18
V_T = 19
V_OO, V_DQ, V_QO = 24, 25, 26
V_Q, V_S, V_P, V_F, V_E, V_O = 32, 64, 96, 112, 184, 192
V_NM = 136
V_Q2 = 152
NSLOT = 6
S_OFF = 87
S_VSRC, S_KSRC = 68, 69
S_FIRST = 98
S_ONES = 99
S_MK = 88

def kvt_of(a, dst, s_t):
    a(f"s_cmp_ge_u32 s{s_t}, s{S_N0}")
    a(f"s_cselect_b32 s{dst}, s{S_N0}, 0")
    a(f"s_sub_u32 s{dst}, s{s_t}, s{dst}")
    a(f"s_add_u32 s{dst}, s{dst}, s{S_OFF}")

def b_dma(a, which, s_kvt):
    srd, vreg, sm0 = (SK, V_KD, S_KM0) if which == "K" else (SV, V_VD, S_VM0)
    a(f"s_lshl_b32 s{S_T2}, s{s_kvt}, 19")
    for u in range(4):
        a(f"s_add_u32 m0, s{sm0}, {u*4096}")
        a("s_nop 0")
        a(f"buffer_load_dwordx4 v{vreg}, s[{srd}:{srd+3}], s{S_T2} offen lds")
        if u < 3:
            a(f"s_add_u32 s{S_T2}, s{S_T2}, {16*8192}")
    a(f"s_xor_b32 s{sm0}, s{sm0}, 0x4000")

def dma_groups():
    out = []
    for which in ("V", "K"):
        srd, vreg, sm0, ssrc = (SK, V_KD, S_KM0, S_KSRC) if which == "K" else (SV, V_VD, S_VM0, S_VSRC)
        for u in range(4):
            g = [f"s_add_u32 m0, s{sm0}, {u*4096}", "s_nop 0",
                 f"buffer_load_dwordx4 v{vreg}, s[{srd}:{srd+3}], s{ssrc} offen lds"]
            if u < 3:
                g.append(f"s_add_u32 s{ssrc}, s{ssrc}, {16*8192}")
            else:
                g.append(f"s_xor_b32 s{sm0}, s{sm0}, 0x4000")
            out.append(g)
    return out

def dma_params(a):
    for add, dst in ((1, S_VSRC), (2, S_KSRC)):
        a(f"s_add_u32 s{S_T0}, s{S_T}, {add}")
        kvt_of(a, S_T1, S_T0)
        a(f"s_lshl_b32 s{S_T1}, s{S_T1}, 19")
        a(f"s_cmp_ge_u32 s{S_T0}, 17")
        a(f"s_cselect_b32 s{dst}, 0x7f000000, s{S_T1}")

class MSched:
    def __init__(self, a, ops, pre=0, ahead=4):
        self.a, self.ops, self.ahead = a, ops, ahead
    def reads(self, i):
        kind, (x, y) = self.ops[i]
        f = V_F + (i % NSLOT) * 4
        if kind == "pv":
            db, s = x, y
            return [f"ds_read_b64_tr_b16 {vr(f+2*t,2)}, v{V_VA+db} offset:{32768 + (16*s+8*t)*256}" for t in range(2)]
        else:
            kvb, ks = x, y
            return [f"ds_read_b128 {vr(f,4)}, v{V_KA+ks} offset:{kvb*8192}"]
    def mfma(self, i):
        kind, (x, y) = self.ops[i]
        f = V_F + (i % NSLOT) * 4
        if kind == "pv":
            db, s = x, y
            d = vr(V_O + db * 16, 16)
            return f"v_mfma_f32_32x32x16_bf16 {d}, {vr(f,4)}, {vr(V_P+4*s,4)}, {d}"
        else:
            kvb, ks = x, y
            d = vr(V_S + kvb * 16, 16)
            c = d if ks else vr(V_NM, 16)
            return f"v_mfma_f32_32x32x16_bf16 {d}, {vr(f,4)}, {vr(V_Q+4*ks,4)}, {c}"
    def emit(self, npre):
        a = self.a
        n = len(self.ops)
        issued = npre
        cnt_after = {}
        total = 0
        lastpos = {}
        for i in range(npre):
            lastpos[i] = -1
        for i in range(n):
            while issued < min(n, i + self.ahead + 1):
                r = self.reads(issued)
                for s in r:
                    a(s)
                    total += 1
                lastpos[issued] = total
                issued += 1
            if lastpos[i] >= 0:
                w = total - lastpos[i]
                a(f"s_waitcnt lgkmcnt({min(w,15)})")
            a(self.mfma(i))

PV_OPS = [("pv", (db, s)) for s in range(4) for db in range(4)]
QK_OPS = [("qk", (kvb, ks)) for ks in range(8) for kvb in range(2)]
NPRE = 4

def exp_block(a, sreg, mreg, groups=()):
    groups = list(groups)
    for pr in range(16):
        if groups and pr % 2 == 0:
            for x in groups.pop(0): a(x)
        s0 = sreg + 2 * pr
        e = V_E + (pr % 4) * 2
        a(f"v_exp_f32 v{e}, v{s0}")
        a(f"v_exp_f32 v{e+1}, v{s0+1}")
        if pr > 0:
            pe = V_E + ((pr - 1) % 4) * 2
            a(f"v_cvt_pk_bf16_f32 v{V_P+pr-1}, v{pe}, v{pe+1}")
            if pr == 1:
                a(f"v_mov_b32 v{V_SUM}, v{pe}")
                a(f"v_mov_b32 v{V_SUM2}, v{pe+1}")
            else:
                a(f"v_add_f32 v{V_SUM}, v{V_SUM}, v{pe}")
                a(f"v_add_f32 v{V_SUM2}, v{V_SUM2}, v{pe+1}")
    pe = V_E + (15 % 4) * 2
    a("s_nop 0")
    a(f"v_cvt_pk_bf16_f32 v{V_P+15}, v{pe}, v{pe+1}")
    a(f"v_add_f32 v{V_SUM}, v{V_SUM}, v{pe}")
    a(f"v_add_f32 v{V_SUM2}, v{V_SUM2}, v{pe+1}")
    a("s_nop 0")
    a(f"v_add_f32 v{V_SUM}, v{V_SUM}, v{V_SUM2}")

def b_epilogue(a):
    t0, t1 = V_T, V_T + 1
    a(f"v_mov_b32 v{t0}, v{V_LS}")
    a(f"v_mov_b32 v{t1}, v{V_LS}")
    a("s_nop 1")
    a(f"v_permlane32_swap_b32 v{t0}, v{t1}")
    a(f"v_add_f32 v{t0}, v{t0}, v{t1}")
    a(f"v_rcp_f32 v{t0}, v{t0}")
    a("s_nop 0")
    for db in range(4):
        A0 = V_O + db * 16
        t = V_F + db * 8
        for i in range(16):
            a(f"v_mul_f32 v{A0+i}, v{t0}, v{A0+i}")
        for q in range(4):
            a(f"v_cvt_pk_bf16_f32 v{t+2*q}, v{A0+4*q}, v{A0+4*q+1}")
            a(f"v_cvt_pk_bf16_f32 v{t+2*q+1}, v{A0+4*q+2}, v{A0+4*q+3}")
        a("s_nop 1")
        for q in (0, 2):
            a(f"v_permlane32_swap_b32 v{t+2*q}, v{t+2*q+2}")
            a(f"v_permlane32_swap_b32 v{t+2*q+1}, v{t+2*q+3}")
        for q in (0, 2):
            a(f"buffer_store_dwordx4 {vr(t+2*q,4)}, v{V_OO}, s[{SO}:{SO+3}], 0 offen offset:{(db*32+q*8)*2}")

def b_q_addr(a, s_qb):
    a(f"s_and_b32 s{S_T0}, s{S_W}, 3")
    a(f"s_lshl_b32 s{S_T0}, s{S_T0}, 5")
    a(f"s_add_u32 s{S_QMIN}, s{s_qb}, s{S_T0}")
    a(f"v_and_b32 v{V_T}, 31, v{V_L}")
    a(f"v_add_u32 v{V_T}, s{S_QMIN}, v{V_T}")
    a(f"v_lshrrev_b32 v{V_T+1}, 5, v{V_L}")
    a(f"v_lshlrev_b32 v{V_OO}, 13, v{V_T}")
    a(f"v_lshl_add_u32 v{V_OO}, v{V_T+1}, 4, v{V_OO}")
    a(f"v_lshlrev_b32 v{V_T+1}, 2, v{V_T+1}")
    a(f"v_sub_u32 v{V_QO}, v{V_T}, v{V_T+1}")
def b_q_loads(a, dst):
    for ks in range(8):
        a(f"buffer_load_dwordx4 {vr(dst+4*ks,4)}, v{V_OO}, s[{SQ}:{SQ+3}], 0 offen offset:{ks*32}")
def b_reset(a):
    for i in range(16):
        a(f"v_mov_b32 v{V_NM+i}, 0")
    a(f"v_mov_b32 v{V_LS}, 0")
    a(f"s_mov_b32 s{S_FIRST}, 1")
    for i in range(64):
        a(f"v_mov_b32 v{V_O+i}, 0")

def job_flags(a):
    kvt_of(a, S_KVT, S_T)
    a(f"s_lshl_b32 s{S_T0}, s{S_KVT}, 6")
    a(f"s_add_u32 s{S_T1}, s{S_QMIN}, 31")
    a(f"s_cmp_le_u32 s{S_T0}, s{S_T1}")
    a(f"s_cselect_b32 s{S_ACT}, 1, 0")
    a(f"s_cmp_ge_u32 s{S_T}, 17")
    a(f"s_cselect_b32 s{S_ACT}, 0, s{S_ACT}")
    a(f"s_add_u32 s{S_T0}, s{S_T0}, 63")
    a(f"s_cmp_gt_u32 s{S_T0}, s{S_QMIN}")
    a(f"s_cselect_b32 s{S_MSK}, 1, 0")

import os
PROF = os.environ.get("APROF")
def stamp(a, idx):
    if not PROF: return
    a(f"s_memtime s[{70+2*idx}:{71+2*idx}]")
    if idx == 0:
        a("s_memrealtime s[100:101]")
def dump_stamps(a, n, wgsel, swave):
    if not PROF: return
    lab = a.newlabel("nodump")
    a("s_waitcnt lgkmcnt(0) vmcnt(0)")
    a(f"s_memtime s[{70+2*(n-1)}:{71+2*(n-1)}]")
    a("s_memrealtime s[76:77]")
    a("s_waitcnt lgkmcnt(0)")
    a("s_sub_u32 s76, s76, s100")
    a("s_add_u32 s76, s76, s70")
    a(f"s_mov_b32 s78, s{70+2*(n-1)}")
    a("s_waitcnt lgkmcnt(0) vmcnt(0)")
    a(f"s_cmp_eq_u32 s2, {wgsel}")
    a(f"s_cbranch_scc0 {lab}")
    make_srd(a, 92, D_DBG, 0, None, 256)
    a(f"s_mul_i32 s96, s{swave}, 32")
    a("v_mov_b32 v17, s96")
    for i in range(min(n,8)):
        a(f"s_sub_u32 s97, s{70+2*i}, s70")
        a("v_mov_b32 v18, s97")
        a(f"buffer_store_dword v18, v17, s[92:95], 0 offen offset:{4*i}")
    if os.environ.get("APROF2"):
        make_srd(a, 92, D_WS, WS_SIZE - 4096 + 1024, None, WS_SIZE)
        a(f"s_lshl_b32 s96, s{swave}, 8")
        a("v_lshlrev_b32 v17, 2, v1")
        a("v_add_u32 v17, s96, v17")
        a("buffer_store_dword v190, v17, s[92:95], 0 offen")
    a.label(lab)

def cstamp(a, idx):
    if not PROF: return
    lab = a.newlabel("cs")
    a(f"s_cmp_eq_u32 s{S_T}, 12")
    a(f"s_cbranch_scc0 {lab}")
    a(f"s_memtime s[{70+2*idx}:{71+2*idx}]")
    a.label(lab)

def gen_attn_b(a):
    a.label("L_b_start")
    stamp(a, 0)
    a(f"v_and_b32 v{V_L}, 63, v0")
    a(f"v_lshrrev_b32 v{V_T}, 6, v0")
    a("s_nop 0")
    a(f"v_readfirstlane_b32 s{S_W}, v{V_T}")
    a("s_nop 3")
    a(f"s_lshr_b32 s{S_G}, s{S_W}, 2")
    a(f"s_and_b32 s{S_T0}, s3, 7")
    a(f"s_lshr_b32 s{S_T1}, s3, 3")
    a(f"s_lshl_b32 s{S_T0}, s{S_T0}, 2")
    a(f"s_and_b32 s{S_I}, s{S_T1}, 3")
    a(f"s_add_u32 s{S_T0}, s{S_T0}, s{S_I}")
    a(f"s_lshr_b32 s{S_I}, s{S_T1}, 2")
    a(f"s_lshl_b32 s{S_HOFF}, s{S_T0}, 8")
    sz = 2048 * 4096 * 2
    make_srd(a, SQ, D_WS, WS_QB, S_HOFF, WS_QB + sz)
    make_srd(a, SK, D_WS, WS_KB, S_HOFF, WS_KB + sz)
    make_srd(a, SV, D_WS, WS_VB, S_HOFF, WS_VB + sz)
    make_srd(a, SO, D_WS, WS_OB, S_HOFF, WS_OB + sz)
    a(f"s_mov_b32 s{S_THR}, 0x{f32bits(THR):x}")
    a(f"s_mov_b32 s{S_ONES}, 0x3f803f80")
    a(f"s_mov_b32 s{S_NEGBIG}, 0x{f32bits(NEG_BIG):x}")
    a(f"s_lshl_b32 s{S_T0}, s{S_I}, 1")
    a(f"s_add_u32 s{S_T0}, s{S_T0}, 2")
    a(f"s_cmp_eq_u32 s{S_G}, 0")
    a(f"s_cselect_b32 s{S_N0}, s{S_T0}, 18")
    a(f"s_sub_u32 s{S_T0}, 17, s{S_T0}")
    a(f"s_cmp_eq_u32 s{S_G}, 0")
    a(f"s_cselect_b32 s{S_OFF}, 0, s{S_T0}")
    a(f"s_lshl_b32 s{S_T0}, s{S_I}, 7")
    a(f"s_sub_u32 s{S_T1}, {15*128}, s{S_T0}")
    a(f"s_cmp_eq_u32 s{S_G}, 0")
    a(f"s_cselect_b32 s{S_QB}, s{S_T0}, s{S_T1}")
    b_q_addr(a, S_QB)
    b_q_loads(a, V_Q)
    b_reset(a)
    t0, t1, t2, t3 = V_T, V_T + 1, V_T + 2, V_T + 3
    a(f"s_and_b32 s{S_T0}, s{S_W}, 3")
    a(f"s_lshl_b32 s{S_T1}, s{S_T0}, 2")
    a(f"v_lshrrev_b32 v{t0}, 4, v{V_L}")
    a(f"v_add_u32 v{t1}, s{S_T1}, v{t0}")
    a(f"v_and_b32 v{t2}, 15, v{V_L}")
    a(f"v_xor_b32 v{t3}, v{t2}, v{t1}")
    a(f"v_lshlrev_b32 v{t1}, 13, v{t1}")
    a(f"v_lshl_add_u32 v{V_KD}, v{t3}, 4, v{t1}")
    a(f"v_lshlrev_b32 v{t0}, 2, v{t0}")
    a(f"v_xor_b32 v{t3}, v{t2}, v{t0}")
    a(f"v_lshl_add_u32 v{V_VD}, v{t3}, 4, v{t1}")
    a(f"s_lshl_b32 s{S_T1}, s{S_G}, 16")
    a(f"s_lshl_b32 s{S_T0}, s{S_T0}, 10")
    a(f"s_add_u32 s{S_KM0}, s{S_T1}, s{S_T0}")
    a(f"s_add_u32 s{S_VM0}, s{S_KM0}, 0x8000")
    a(f"v_and_b32 v{t0}, 31, v{V_L}")
    a(f"v_lshlrev_b32 v{t0}, 8, v{t0}")
    a(f"v_add_u32 v{t0}, s{S_T1}, v{t0}")
    a(f"v_lshrrev_b32 v{t1}, 5, v{V_L}")
    a(f"v_xor_b32 v{t2}, v{t2}, v{t1}")
    for ks in range(8):
        a(f"v_xor_b32 v{t3}, {2*ks}, v{t2}")
        a(f"v_lshl_add_u32 v{V_KA+ks}, v{t3}, 4, v{t0}")
    a(f"v_bfe_u32 v{t0}, v{V_L}, 2, 2")
    a(f"v_lshl_add_u32 v{t1}, v{t1}, 2, v{t0}")
    a(f"v_lshlrev_b32 v{t1}, 8, v{t1}")
    a(f"v_add_u32 v{t1}, s{S_T1}, v{t1}")
    a(f"v_and_b32 v{t2}, 1, v{V_L}")
    a(f"v_lshl_add_u32 v{t1}, v{t2}, 3, v{t1}")
    a(f"v_bfe_u32 v{t2}, v{V_L}, 4, 1")
    a(f"v_bfe_u32 v{t3}, v{V_L}, 1, 1")
    a(f"v_lshl_add_u32 v{t2}, v{t2}, 1, v{t3}")
    a(f"v_lshlrev_b32 v{t0}, 2, v{t0}")
    for db in range(4):
        a(f"v_add_u32 v{t3}, {4*db}, v{t2}")
        a(f"v_xor_b32 v{t3}, v{t3}, v{t0}")
        a(f"v_lshl_add_u32 v{V_VA+db}, v{t3}, 4, v{t1}")
        a(f"v_xor_b32 v{V_VA+db}, 0x4000, v{V_VA+db}")
    a(f"s_mov_b32 s{S_T}, 0")
    kvt_of(a, S_KVT, S_T)
    b_dma(a, "K", S_KVT)
    b_dma(a, "V", S_KVT)
    a(f"s_mov_b32 s{S_T}, 1")
    kvt_of(a, S_KVT, S_T)
    b_dma(a, "K", S_KVT)
    a(f"s_mov_b32 s{S_T}, 0")
    a(f"s_mov_b32 s{S_ACTP}, 0")
    job_flags(a)
    a("s_waitcnt vmcnt(8)")
    a("s_barrier")
    a(f"s_cmp_eq_u32 s{S_G}, 0")
    stamp(a, 1)
    a("s_cbranch_scc1 L_b_loop")
    a("s_barrier")
    a.label("L_b_loop")
    if os.environ.get("APROF2"):
        a("s_memtime s[72:73]")
        a("s_waitcnt lgkmcnt(0)")
        a(f"s_sub_u32 s72, s72, s70")
        a(f"s_mov_b32 m0, s{S_T}")
        a("s_nop 0")
        a(f"v_writelane_b32 v190, s72, m0")
    cstamp(a, 3)
    a("s_setprio 1")
    a(f"s_cmp_eq_u32 s{S_T}, s{S_N0}")
    a("s_cbranch_scc1 L_b_mswitch")
    a(f"s_and_b32 s{S_T0}, s{S_ACTP}, s{S_ACT}")
    a("s_cbranch_scc0 L_b_mrare")
    MSched(a, PV_OPS + QK_OPS).emit(NPRE)
    a.label("L_b_mdone")
    a("s_setprio 0")
    cstamp(a, 4)
    for ks in range(8):
        a(f"v_xor_b32 v{V_KA+ks}, 0x4000, v{V_KA+ks}")
    for db in range(4):
        a(f"v_xor_b32 v{V_VA+db}, 0x4000, v{V_VA+db}")
    a(f"s_cmp_ge_u32 s{S_T}, 17")
    a("s_cbranch_scc1 L_b_fin")
    dma_params(a)
    a("s_waitcnt vmcnt(4)")
    a("s_barrier")
    cstamp(a, 5)
    a(f"s_cmp_eq_u32 s{S_ACT}, 0")
    a("s_cbranch_scc1 L_b_sinact")
    a(f"s_cmp_eq_u32 s{S_MSK}, 0")
    a("s_cbranch_scc1 L_b_nomask")
    a(f"s_lshl_b32 s{S_T0}, s{S_KVT}, 6")
    a(f"v_subrev_u32 v{V_DQ}, s{S_T0}, v{V_QO}")
    a(f"v_mov_b32 v{V_T}, s{S_NEGBIG}")
    for kvb in range(2):
        for r4 in range(4):
            for r in range(4):
                cst = kvb * 32 + 8 * r4 + r
                a(f"v_cmp_le_i32 s[{S_MK+2*r}:{S_MK+2*r+1}], {cst}, v{V_DQ}")
            for r in range(4):
                rr = V_S + kvb*16 + r4*4 + r
                a(f"v_cndmask_b32 v{rr}, v{V_T}, v{rr}, s[{S_MK+2*r}:{S_MK+2*r+1}]")
    a.label("L_b_nomask")
    a(f"s_cmp_eq_u32 s{S_FIRST}, 1")
    a("s_cbranch_scc1 L_b_first")
    exp_block(a, V_S, V_M, dma_groups())
    a(f"v_cmp_nge_f32 vcc, s{S_THR}, v{V_SUM}")
    a("s_nop 0")
    a("s_cbranch_vccnz L_b_fallback")
    a.label("L_b_cont")
    a(f"v_add_f32 v{V_LS}, v{V_LS}, v{V_SUM}")
    ms = MSched(a, PV_OPS)
    for i in range(NPRE):
        for x in ms.reads(i):
            a(x)
    a.label("L_b_send")
    cstamp(a, 7)
    a(f"s_mov_b32 s{S_ACTP}, s{S_ACT}")
    a(f"s_add_u32 s{S_T}, s{S_T}, 1")
    job_flags(a)
    a("s_waitcnt vmcnt(8) lgkmcnt(0)")
    a("s_barrier")
    a("s_branch L_b_loop")
    a.label("L_b_sinact")
    for g in dma_groups():
        for x in g: a(x)
    a("s_branch L_b_send")

    a.label("L_b_mrare")
    a(f"s_cmp_eq_u32 s{S_ACTP}, 0")
    a("s_cbranch_scc1 L_b_mrare_nopv")
    MSched(a, PV_OPS).emit(NPRE)
    a.label("L_b_mrare_nopv")
    a(f"s_cmp_eq_u32 s{S_ACT}, 0")
    a("s_cbranch_scc1 L_b_mdone")
    MSched(a, QK_OPS).emit(0)
    a("s_branch L_b_mdone")
    a.label("L_b_mswitch")
    a(f"s_cmp_eq_u32 s{S_ACTP}, 0")
    a("s_cbranch_scc1 L_b_sw_nopv")
    MSched(a, PV_OPS).emit(NPRE)
    a.label("L_b_sw_nopv")
    a("s_nop 15")
    b_epilogue(a)
    a(f"s_lshl_b32 s{S_T0}, s{S_I}, 7")
    a(f"s_sub_u32 s{S_QB}, {15*128}, s{S_T0}")
    a("s_nop 1")
    b_q_addr(a, S_QB)
    for i in range(32):
        a(f"v_mov_b32 v{V_Q+i}, v{V_Q2+i}")
    b_reset(a)
    a(f"s_mov_b32 s{S_ACTP}, 0")
    job_flags(a)
    a("s_branch L_b_mrare_nopv")

    a.label("L_b_first")
    a(f"s_mov_b32 s{S_FIRST}, 0")
    a(f"s_or_b32 s{S_T0}, s{S_G}, s{S_T}")
    a("s_cbranch_scc1 L_b_noq2")
    a(f"s_lshl_b32 s{S_T0}, s{S_I}, 8")
    a(f"s_sub_u32 s{S_T0}, {15*128}, s{S_T0}")
    a(f"s_lshl_b32 s{S_T0}, s{S_T0}, 13")
    for ks in range(8):
        a(f"buffer_load_dwordx4 {vr(V_Q2+4*ks,4)}, v{V_OO}, s[{SQ}:{SQ+3}], s{S_T0} offen offset:{ks*32}")
    a.label("L_b_noq2")
    for g in dma_groups():
        for x in g: a(x)
    t0, t1 = V_T, V_T + 1
    def rowmax():
        a(f"v_max3_f32 v{t0}, v{V_S}, v{V_S+1}, v{V_S+2}")
        for i in range(3, 31, 2):
            a(f"v_max3_f32 v{t0}, v{t0}, v{V_S+i}, v{V_S+i+1}")
        a(f"v_max_f32 v{t0}, v{t0}, v{V_S+31}")
        a(f"v_mov_b32 v{t1}, v{t0}")
        a("s_nop 1")
        a(f"v_permlane32_swap_b32 v{t0}, v{t1}")
    rowmax()
    a(f"v_max_f32 v{t0}, v{t0}, v{t1}")
    a("s_branch L_b_shift")
    a.label("L_b_fallback")
    rowmax()
    a(f"v_max3_f32 v{t0}, v{t0}, v{t1}, 0")
    a(f"v_exp_f32 v{t1}, -v{t0}")
    a("s_nop 0")
    a(f"v_mul_f32 v{V_LS}, v{V_LS}, v{t1}")
    for i in range(64):
        a(f"v_mul_f32 v{V_O+i}, v{V_O+i}, v{t1}")
    a.label("L_b_shift")
    for i in range(32):
        a(f"v_sub_f32 v{V_S+i}, v{V_S+i}, v{t0}")
    for i in range(16):
        a(f"v_sub_f32 v{V_NM+i}, v{V_NM+i}, v{t0}")
    exp_block(a, V_S, None)
    a("s_branch L_b_cont")

    a.label("L_b_fin")
    stamp(a, 2)
    a(f"v_sub_f32 v{V_M}, 0, v{V_NM}")
    a("s_waitcnt vmcnt(0)")
    a("s_barrier")
    a(f"s_cmp_eq_u32 s{S_G}, 0")
    a("s_cbranch_scc0 L_b_fin1")
    a("s_nop 15")
    a(f"s_lshl_b32 s{S_T0}, s{S_W}, 14")
    a(f"v_lshlrev_b32 v{t0}, 4, v{V_L}")
    a(f"v_add_u32 v{t0}, s{S_T0}, v{t0}")
    for ch in range(16):
        a(f"ds_write_b128 v{t0}, {vr(V_O+4*ch,4)} offset:{ch*1024}")
    a(f"s_lshl_b32 s{S_T0}, s{S_W}, 9")
    a(f"s_add_u32 s{S_T0}, s{S_T0}, 0x20000")
    a(f"v_lshlrev_b32 v{t0}, 3, v{V_L}")
    a(f"v_add_u32 v{t0}, s{S_T0}, v{t0}")
    a(f"ds_write_b64 v{t0}, {vr(V_M,2)}")
    a("s_waitcnt lgkmcnt(0)")
    a("s_barrier")
    dump_stamps(a, 9, int(PROF) if PROF else 0, S_W)
    a("s_branch L_k2_end")
    a.label("L_b_fin1")
    a(f"s_and_b32 s{S_T1}, s{S_W}, 3")
    a(f"s_lshl_b32 s{S_T0}, s{S_T1}, 9")
    a(f"s_add_u32 s{S_T0}, s{S_T0}, 0x20000")
    a(f"v_lshlrev_b32 v{t0}, 3, v{V_L}")
    a(f"v_add_u32 v{t0}, s{S_T0}, v{t0}")
    a(f"ds_read_b64 {vr(V_E,2)}, v{t0}")
    a(f"s_lshl_b32 s{S_T0}, s{S_T1}, 14")
    a(f"v_lshlrev_b32 v{t0}, 4, v{V_L}")
    a(f"v_add_u32 v{t0}, s{S_T0}, v{t0}")
    for ch in range(16):
        a(f"ds_read_b128 {vr(V_Q+4*ch,4)}, v{t0} offset:{ch*1024}")
    a("s_waitcnt lgkmcnt(0)")
    a(f"v_max_f32 v{t0}, v{V_M}, v{V_E}")
    a(f"v_sub_f32 v{t1}, v{V_M}, v{t0}")
    a(f"v_sub_f32 v{V_T+2}, v{V_E}, v{t0}")
    a(f"v_exp_f32 v{t1}, v{t1}")
    a(f"v_exp_f32 v{V_T+2}, v{V_T+2}")
    a("s_nop 0")
    a(f"v_mul_f32 v{V_LS}, v{V_LS}, v{t1}")
    a(f"v_fmac_f32 v{V_LS}, v{V_E+1}, v{V_T+2}")
    for i in range(64):
        a(f"v_mul_f32 v{V_O+i}, v{V_O+i}, v{t1}")
        a(f"v_fmac_f32 v{V_O+i}, v{V_Q+i}, v{V_T+2}")
    b_epilogue(a)
    dump_stamps(a, 9, int(PROF) if PROF else 0, S_W)
    a("s_branch L_k2_end")

def gen_k2(a):
    name = "k2_attn_kernel"
    kernel_header(a, name)
    tl_start(a)
    load_ptrs(a)
    a("s_cmp_ge_u32 s2, 512")
    a("s_cbranch_scc1 L_k2_end")
    a("s_waitcnt lgkmcnt(0)")
    a("s_and_b32 s3, s2, 127")
    a("s_lshr_b32 s4, s2, 8")
    a("s_lshl_b32 s4, s4, 7")
    a("s_add_u32 s3, s3, s4")
    a("s_bitcmp1_b32 s2, 7")
    a("s_cbranch_scc0 L_b_start")
    a("s_add_u32 s3, s3, 256")
    a("s_branch L_a_start")
    gen_attn_b(a)
    import k2a
    k2a.gen_attn_a(a)
    a.label("L_k2_end")
    tl_end(a, 1)
    a("s_endpgm")
    return name, (512, 512, 131072 + 4096)
```

```python
from common import *
THR = float(2.0 ** 60)
SQ, SK, SV, SO = 4, 8, 12, 16
S_W, S_CH, S_M0, S_T0, S_T1, S_THR, S_CLAMP, S_KOFF = 20, 21, 22, 23, 24, 25, 26, 27
V_L = 1
V_SUM2 = 6
V_KD, V_VD, V_OO = 2, 3, 7
V_LS, V_SUM, V_T = 8, 9, 10
V_Q = 16
V_NM = 24
V_O = 40
V_P = 56
V_E = 88
V_KF = 96
V_VF = 128
V_S = 160
V_KA, V_VA = 224, 228
NT = 8
CH_BYTES = NT * 4096
BUFB = 2 * CH_BYTES
NCH = 32 // NT

def exp_block(a, S, P, inserts=None):
    inserts = inserts or {}
    for pr in range(16):
        s0 = S + 2 * pr
        e = V_E + (pr % 4) * 2
        a(f"v_exp_f32 v{e}, v{s0}")
        a(f"v_exp_f32 v{e+1}, v{s0+1}")
        for x in inserts.get(pr, []):
            a(x)
        if pr > 0:
            pe = V_E + ((pr - 1) % 4) * 2
            a(f"v_cvt_pk_bf16_f32 v{P+pr-1}, v{pe}, v{pe+1}")
            if pr == 1:
                a(f"v_mov_b32 v{V_SUM}, v{pe}")
                a(f"v_mov_b32 v{V_SUM2}, v{pe+1}")
            else:
                a(f"v_add_f32 v{V_SUM}, v{V_SUM}, v{pe}")
                a(f"v_add_f32 v{V_SUM2}, v{V_SUM2}, v{pe+1}")
    pe = V_E + (15 % 4) * 2
    a("s_nop 0")
    a(f"v_cvt_pk_bf16_f32 v{P+15}, v{pe}, v{pe+1}")
    a(f"v_add_f32 v{V_SUM}, v{V_SUM}, v{pe}")
    a(f"v_add_f32 v{V_SUM2}, v{V_SUM2}, v{pe+1}")
    a("s_nop 0")
    a(f"v_add_f32 v{V_SUM}, v{V_SUM}, v{V_SUM2}")

def kreads(buf, j, setno):
    return [f"ds_read_b128 {vr(V_KF + setno*16 + (kvb*2+ks)*4, 4)}, v{V_KA+2*buf+ks} offset:{(j*64+kvb*32)*64}"
            for kvb in range(2) for ks in range(2)]
def vreads(buf, j, setno):
    return [f"ds_read_b64_tr_b16 {vr(V_VF+setno*16+4*s+2*t,2)}, v{V_VA+buf} offset:{CH_BYTES + (j*64+16*s+8*t)*64}"
            for s in range(4) for t in range(2)]
def qk(setno, sbuf):
    out = []
    for ks in range(2):
        for kvb in range(2):
            f = V_KF + setno * 16 + (kvb * 2 + ks) * 4
            d = vr(V_S + sbuf * 32 + kvb * 16, 16)
            c = d if ks else vr(V_NM, 16)
            out.append(f"v_mfma_f32_32x32x16_bf16 {d}, {vr(f,4)}, {vr(V_Q+4*ks,4)}, {c}")
    return out
def pv(setno):
    return [f"v_mfma_f32_32x32x16_bf16 {vr(V_O,16)}, {vr(V_VF+setno*16+4*s,4)}, {vr(V_P+setno*16+4*s,4)}, {vr(V_O,16)}" for s in range(4)]

def dma(a, buf):
    for u in range(CH_BYTES // 8192):
        a(f"s_add_u32 s{S_T0}, s{S_KOFF}, {u*8192}")
        a(f"s_add_u32 m0, s{S_M0}, {buf*BUFB + u*8192}")
        a("s_nop 0")
        a(f"buffer_load_dwordx4 v{V_KD}, s[{SK}:{SK+3}], s{S_T0} offen lds")
        a(f"s_add_u32 m0, s{S_M0}, {buf*BUFB + CH_BYTES + u*8192}")
        a("s_nop 0")
        a(f"buffer_load_dwordx4 v{V_VD}, s[{SV}:{SV+3}], s{S_T0} offen lds")
    a(f"s_add_u32 s{S_KOFF}, s{S_KOFF}, {CH_BYTES}")

def gen_attn_a(a):
    a.label("L_a_start")
    import k2
    k2.stamp(a, 0)
    a(f"v_and_b32 v{V_L}, 63, v0")
    a(f"v_lshrrev_b32 v{V_T}, 6, v0")
    a("s_nop 0")
    a(f"v_readfirstlane_b32 s{S_W}, v{V_T}")
    a("s_nop 3")
    a("s_sub_u32 s64, s3, 256")
    a("s_lshl_b32 s65, s64, 15")
    make_srd(a, 60, IN_B_WO, 0, 65, 4096*1024*2)
    a("s_lshl_b32 s65, s64, 13")
    make_srd(a, 52, IN_A_WO, 0, 65, 1024*1024*2)
    a("v_lshlrev_b32 v232, 4, v0")
    a("s_mov_b32 s66, 0")
    make_srd(a, SQ, D_WS, WS_QA, None, WS_QA + 2048*1024*2)
    make_srd(a, SK, D_WS, WS_KA, None, WS_KA + 2048*32*2)
    make_srd(a, SV, D_WS, WS_VA, None, WS_VA + 2048*32*2)
    make_srd(a, SO, D_WS, WS_OA, None, WS_OA + 2048*1024*2)
    t0, t1, t2, t3 = V_T, V_T+1, V_T+2, V_T+3
    a(f"s_sub_u32 s{S_T0}, s3, 256")
    a(f"s_lshl_b32 s{S_T0}, s{S_T0}, 3")
    a(f"s_add_u32 s{S_T0}, s{S_T0}, s{S_W}")
    a(f"s_lshl_b32 s{S_T0}, s{S_T0}, 5")
    a(f"v_and_b32 v{t0}, 31, v{V_L}")
    a(f"v_add_u32 v{t1}, s{S_T0}, v{t0}")
    a(f"v_lshrrev_b32 v{t2}, 5, v{V_L}")
    a(f"v_lshlrev_b32 v{V_OO}, 6, v{t1}")
    a(f"v_lshl_add_u32 v{V_OO}, v{t2}, 4, v{V_OO}")
    for ks in range(2):
        a(f"buffer_load_dwordx4 {vr(V_Q+4*ks,4)}, v{V_OO}, s[{SQ}:{SQ+3}], 0 offen offset:{ks*32}")
    a(f"v_lshrrev_b32 v{t1}, 2, v{V_L}")
    a(f"v_lshlrev_b32 v{t1}, 6, v{t1}")
    a(f"v_and_b32 v{t3}, 3, v{V_L}")
    a(f"v_lshrrev_b32 v{V_KD}, 4, v{V_L}")
    a(f"v_xor_b32 v{t3}, v{t3}, v{V_KD}")
    a(f"v_lshl_add_u32 v{V_KD}, v{t3}, 4, v{t1}")
    a(f"v_lshlrev_b32 v{V_VD}, 4, v{V_L}")
    a(f"s_lshl_b32 s{S_M0}, s{S_W}, 10")
    a(f"s_mov_b32 s{S_KOFF}, s{S_M0}")
    a(f"v_lshlrev_b32 v{t0}, 6, v{t0}")
    a(f"v_bfe_u32 v{t1}, v{V_L}, 2, 2")
    a(f"v_xor_b32 v{t3}, v{t1}, v{t2}")
    for ks in range(2):
        a(f"v_xor_b32 v{V_KA+ks}, {2*ks}, v{t3}")
        a(f"v_lshl_add_u32 v{V_KA+ks}, v{V_KA+ks}, 4, v{t0}")
    a(f"v_lshl_add_u32 v{V_VA}, v{t2}, 2, v{t1}")
    a(f"v_lshlrev_b32 v{V_VA}, 6, v{V_VA}")
    a(f"v_bfe_u32 v{t1}, v{V_L}, 4, 1")
    a(f"v_lshl_add_u32 v{V_VA}, v{t1}, 5, v{V_VA}")
    a(f"v_and_b32 v{t1}, 3, v{V_L}")
    a(f"v_lshl_add_u32 v{V_VA}, v{t1}, 3, v{V_VA}")
    for ks in range(2):
        a(f"v_add_u32 v{V_KA+2+ks}, {BUFB}, v{V_KA+ks}")
    a(f"v_add_u32 v{V_VA+1}, {BUFB}, v{V_VA}")
    dma(a, 0)
    for i in range(16):
        a(f"v_mov_b32 v{V_NM+i}, 0")
        a(f"v_mov_b32 v{V_O+i}, 0")
        a(f"v_mov_b32 v{V_P+16+i}, 0")
        a(f"v_mov_b32 v{V_VF+16+i}, 0")
    a(f"v_mov_b32 v{V_LS}, 0")
    a(f"s_mov_b32 s{S_THR}, 0xbf800000")
    a(f"s_mov_b32 s{S_CLAMP}, 0xff800000")
    a(f"s_mov_b32 s{S_CH}, 0")
    a(f"s_waitcnt vmcnt(0)")
    a("s_barrier")
    for x in kreads(0, 0, 0) + kreads(0, 1, 1): a(x)
    a("s_waitcnt lgkmcnt(4)")
    for x in qk(0, 0): a(x)
    a("s_nop 7")
    a("s_nop 3")
    k2.stamp(a, 1)
    a.label("L_a_loop")
    fbs = []
    for buf in range(2):
        for j in range(NT):
            sb = j & 1
            if j == 1:
                a("s_barrier")
                sk = a.newlabel("askip")
                a(f"s_add_u32 s{S_T1}, s{S_CH}, {buf}")
                a(f"s_cmp_ge_u32 s{S_T1}, {NCH-1}")
                a(f"s_cbranch_scc1 {sk}")
                dma(a, 1 - buf)
                a.label(sk)
                for _ in range(2):
                    a("buffer_load_dwordx4 v[236:239], v232, s[60:63], s66 offen")
                    a("s_add_u32 s66, s66, 8192")
                if buf == 1:
                    a("buffer_load_dwordx4 v[236:239], v232, s[52:55], 0 offen")
            if j == NT - 2:
                a("s_waitcnt vmcnt(0)")
                a("s_barrier")
            rd = vreads(buf, j, sb)
            if j + 2 < NT:
                rd += kreads(buf, j + 2, sb)
            else:
                rd += kreads(1 - buf, j + 2 - NT, sb)
            a("s_waitcnt lgkmcnt(0)")
            pvs = pv(sb ^ 1)
            qks = qk(sb ^ 1, sb ^ 1)
            ins = {}
            for i in range(4):
                ins[1 + 2 * i] = [pvs[i]]
                ins[9 + 2 * i - 1] = [qks[i]]
            for i, x in enumerate(rd):
                ins.setdefault(i, []).append(x)
            exp_block(a, V_S + sb * 32, V_P + sb * 16, ins)
            fb = a.newlabel("afb")
            cont = a.newlabel("acont")
            fbs.append((fb, cont, sb))
            a(f"v_cmp_nge_f32 vcc, s{S_THR}, v{V_SUM}")
            a("s_nop 0")
            a(f"s_cbranch_vccnz {fb}")
            a.label(cont)
            a(f"v_add_f32 v{V_LS}, v{V_LS}, v{V_SUM}")
    a(f"s_add_u32 s{S_CH}, s{S_CH}, 2")
    a(f"s_cmp_lt_u32 s{S_CH}, {NCH}")
    a("s_cbranch_scc1 L_a_loop")
    a("s_waitcnt lgkmcnt(0)")
    for x in pv(1): a(x)
    k2.stamp(a, 2)
    a("s_nop 15")
    a(f"v_mov_b32 v{t0}, v{V_LS}")
    a(f"v_mov_b32 v{t1}, v{V_LS}")
    a("s_nop 1")
    a(f"v_permlane32_swap_b32 v{t0}, v{t1}")
    a(f"v_add_f32 v{t0}, v{t0}, v{t1}")
    a(f"v_rcp_f32 v{t0}, v{t0}")
    a("s_nop 0")
    t = V_P
    for i in range(16):
        a(f"v_mul_f32 v{V_O+i}, v{t0}, v{V_O+i}")
    for q in range(4):
        a(f"v_cvt_pk_bf16_f32 v{t+2*q}, v{V_O+4*q}, v{V_O+4*q+1}")
        a(f"v_cvt_pk_bf16_f32 v{t+2*q+1}, v{V_O+4*q+2}, v{V_O+4*q+3}")
    a("s_nop 1")
    for q in (0, 2):
        a(f"v_permlane32_swap_b32 v{t+2*q}, v{t+2*q+2}")
        a(f"v_permlane32_swap_b32 v{t+2*q+1}, v{t+2*q+3}")
    for q in (0, 2):
        a(f"buffer_store_dwordx4 {vr(t+2*q,4)}, v{V_OO}, s[{SO}:{SO+3}], 0 offen offset:{q*16}")
    k2.dump_stamps(a, 4, int(k2.PROF) if k2.PROF else 0, S_W)
    a("s_branch L_k2_end")
    for sb in range(2):
        S = V_S + sb * 32
        SN = V_S + (sb ^ 1) * 32
        a.label(f"L_a_fb{sb}")
        a("s_nop 15")
        a(f"v_max3_f32 v{t0}, v{S}, v{S+1}, v{S+2}")
        for i in range(3, 31, 2):
            a(f"v_max3_f32 v{t0}, v{t0}, v{S+i}, v{S+i+1}")
        a(f"v_max_f32 v{t0}, v{t0}, v{S+31}")
        a(f"v_mov_b32 v{t1}, v{t0}")
        a("s_nop 1")
        a(f"v_permlane32_swap_b32 v{t0}, v{t1}")
        a(f"v_max3_f32 v{t0}, v{t0}, v{t1}, s{S_CLAMP}")
        a(f"v_max_f32 v{t1}, 0, v{t0}")
        a(f"v_exp_f32 v{t1}, -v{t1}")
        for i in range(32):
            a(f"v_sub_f32 v{S+i}, v{S+i}, v{t0}")
        for i in range(32):
            a(f"v_sub_f32 v{SN+i}, v{SN+i}, v{t0}")
        for i in range(16):
            a(f"v_sub_f32 v{V_NM+i}, v{V_NM+i}, v{t0}")
            a(f"v_mul_f32 v{V_O+i}, v{V_O+i}, v{t1}")
        a(f"v_mul_f32 v{V_LS}, v{V_LS}, v{t1}")
        a(f"s_mov_b32 s{S_THR}, 0x{f32bits(THR):x}")
        a(f"s_mov_b32 s{S_CLAMP}, 0")
        exp_block(a, S, V_P + sb * 16)
        a("s_setpc_b64 s[30:31]")
    for fb, cont, sb in fbs:
        a.label(fb)
        a("s_getpc_b64 s[30:31]")
        lab = a.newlabel("pc")
        a.label(lab)
        a(f"s_add_u32 s30, s30, {cont}-{lab}")
        a(f"s_addc_u32 s31, s31, -1")
        a(f"s_branch L_a_fb{sb}")
```

```python
from common import *
import os
import k2
from k2 import (SQ, SK, SV, SO, S_W, S_G, S_I, S_N0, S_T, S_KVT, S_QMIN, S_ACT, S_MSK, S_KM0, S_VM0, S_T0, S_T1, S_THR,
                S_HOFF, S_QB, S_NEGBIG, S_T2, S_VSRC, S_KSRC, S_FIRST, S_MK, S_OFF,
                V_L, V_KD, V_VD, V_KA, V_VA, V_M, V_LS, V_SUM, V_T, V_OO, V_DQ, V_QO, V_Q, V_S, V_P, V_F, V_E, V_O, V_NM, V_Q2,
                NEG_BIG, THR, PV_OPS, QK_OPS, MSched, kvt_of, b_q_addr, b_q_loads, b_reset, b_epilogue, exp_block, dma_groups)
NSTEP = 34
PROF = os.environ.get("V2PROF")
def cst(a, idx, sreg, val):
    if not PROF: return
    lab = a.newlabel("cs")
    a(f"s_cmp_eq_u32 s{sreg}, {val}")
    a(f"s_cbranch_scc0 {lab}")
    a(f"s_memtime s[{70+2*idx}:{71+2*idx}]")
    a.label(lab)
def dump(a):
    if not PROF: return
    lab = a.newlabel("nodump")
    a("s_waitcnt lgkmcnt(0) vmcnt(0)")
    a(f"s_cmp_eq_u32 s2, {PROF}")
    a(f"s_cbranch_scc0 {lab}")
    make_srd(a, 92, D_DBG, 0, None, 256)
    a(f"s_mul_i32 s96, s{S_W}, 32")
    a("v_mov_b32 v17, s96")
    for i in range(8):
        a(f"s_sub_u32 s97, s{70+2*i}, s70")
        a("v_mov_b32 v18, s97")
        a(f"buffer_store_dword v18, v17, s[92:95], 0 offen offset:{4*i}")
    a.label(lab)

def job_flags(a):
    kvt_of(a, S_KVT, S_T)
    a(f"s_lshl_b32 s{S_T0}, s{S_KVT}, 6")
    a(f"s_add_u32 s{S_T1}, s{S_QMIN}, 31")
    a(f"s_cmp_le_u32 s{S_T0}, s{S_T1}")
    a(f"s_cselect_b32 s{S_ACT}, 1, 0")
    a(f"s_add_u32 s{S_T0}, s{S_T0}, 63")
    a(f"s_cmp_gt_u32 s{S_T0}, s{S_QMIN}")
    a(f"s_cselect_b32 s{S_MSK}, 1, 0")

def dma_params(a):
    a(f"s_add_u32 s{S_T0}, s{S_T}, 1")
    kvt_of(a, S_T1, S_T0)
    a(f"s_lshl_b32 s{S_T1}, s{S_T1}, 19")
    a(f"s_cmp_ge_u32 s{S_T0}, {NSTEP}")
    a(f"s_cselect_b32 s{S_VSRC}, 0x7f000000, s{S_T1}")
    a(f"s_mov_b32 s{S_KSRC}, s{S_VSRC}")

def emit_ops(a, ops, npre, extra=()):
    ms = MSched(a, ops)
    extra = list(extra)
    n = len(ops)
    issued = npre
    total = 0
    lastpos = {i: -1 for i in range(npre)}
    for i in range(n):
        while issued < min(n, i + ms.ahead + 1):
            for s in ms.reads(issued):
                a(s); total += 1
            lastpos[issued] = total
            issued += 1
        if lastpos[i] >= 0:
            a(f"s_waitcnt lgkmcnt({min(total - lastpos[i], 15)})")
        a(ms.mfma(i))
        if extra and i % 2 == 1:
            for s in extra.pop(0): a(s)
    assert not extra

def gen_b(a):
    a.label("L_b_start")
    a(f"s_and_b32 s{S_T0}, s2, 7")
    a(f"s_lshr_b32 s{S_T1}, s2, 3")
    a(f"s_lshl_b32 s{S_T0}, s{S_T0}, 2")
    a(f"s_and_b32 s{S_I}, s{S_T1}, 3")
    a(f"s_add_u32 s{S_T0}, s{S_T0}, s{S_I}")
    a(f"s_lshr_b32 s{S_I}, s{S_T1}, 2")
    a(f"s_lshl_b32 s{S_HOFF}, s{S_T0}, 8")
    sz = 2048 * 4096 * 2
    make_srd(a, SQ, D_WS, WS_QB, S_HOFF, WS_QB + sz)
    make_srd(a, SK, D_WS, WS_KB, S_HOFF, WS_KB + sz)
    make_srd(a, SV, D_WS, WS_VB, S_HOFF, WS_VB + sz)
    make_srd(a, SO, D_WS, WS_OB, S_HOFF, WS_OB + sz)
    a(f"s_mov_b32 s{S_THR}, 0x{f32bits(THR):x}")
    a(f"s_mov_b32 s{S_NEGBIG}, 0x{f32bits(NEG_BIG):x}")
    a(f"s_lshl_b32 s{S_N0}, s{S_I}, 1")
    a(f"s_add_u32 s{S_N0}, s{S_N0}, 2")
    a(f"s_mov_b32 s{S_OFF}, 0")
    a(f"s_lshl_b32 s{S_QB}, s{S_I}, 7")
    b_q_addr(a, S_QB)
    b_q_loads(a, V_Q)
    b_reset(a)
    t0, t1, t2, t3 = V_T, V_T + 1, V_T + 2, V_T + 3
    a(f"s_lshl_b32 s{S_T1}, s{S_W}, 2")
    a(f"v_lshrrev_b32 v{t0}, 4, v{V_L}")
    a(f"v_add_u32 v{t1}, s{S_T1}, v{t0}")
    a(f"v_and_b32 v{t2}, 15, v{V_L}")
    a(f"v_xor_b32 v{t3}, v{t2}, v{t1}")
    a(f"v_lshlrev_b32 v{t1}, 13, v{t1}")
    a(f"v_lshl_add_u32 v{V_KD}, v{t3}, 4, v{t1}")
    a(f"v_lshlrev_b32 v{t0}, 2, v{t0}")
    a(f"v_xor_b32 v{t3}, v{t2}, v{t0}")
    a(f"v_lshl_add_u32 v{V_VD}, v{t3}, 4, v{t1}")
    a(f"s_lshl_b32 s{S_KM0}, s{S_W}, 10")
    a(f"s_add_u32 s{S_VM0}, s{S_KM0}, 0x8000")
    a(f"v_and_b32 v{t0}, 31, v{V_L}")
    a(f"v_lshlrev_b32 v{t0}, 8, v{t0}")
    a(f"v_lshrrev_b32 v{t1}, 5, v{V_L}")
    a(f"v_xor_b32 v{t2}, v{t2}, v{t1}")
    for ks in range(8):
        a(f"v_xor_b32 v{t3}, {2*ks}, v{t2}")
        a(f"v_lshl_add_u32 v{V_KA+ks}, v{t3}, 4, v{t0}")
    a(f"v_bfe_u32 v{t0}, v{V_L}, 2, 2")
    a(f"v_lshl_add_u32 v{t1}, v{t1}, 2, v{t0}")
    a(f"v_lshlrev_b32 v{t1}, 8, v{t1}")
    a(f"v_and_b32 v{t2}, 1, v{V_L}")
    a(f"v_lshl_add_u32 v{t1}, v{t2}, 3, v{t1}")
    a(f"v_bfe_u32 v{t2}, v{V_L}, 4, 1")
    a(f"v_bfe_u32 v{t3}, v{V_L}, 1, 1")
    a(f"v_lshl_add_u32 v{t2}, v{t2}, 1, v{t3}")
    a(f"v_lshlrev_b32 v{t0}, 2, v{t0}")
    for db in range(4):
        a(f"v_add_u32 v{t3}, {4*db}, v{t2}")
        a(f"v_xor_b32 v{t3}, v{t3}, v{t0}")
        a(f"v_lshl_add_u32 v{V_VA+db}, v{t3}, 4, v{t1}")
    a(f"s_mov_b32 s{S_VSRC}, 0")
    a(f"s_mov_b32 s{S_KSRC}, 0")
    for g in dma_groups():
        for x in g: a(x)
    a(f"s_lshl_b32 s{S_T0}, s{S_I}, 8")
    a(f"s_sub_u32 s{S_T0}, {15*128}, s{S_T0}")
    a(f"s_lshl_b32 s{S_T0}, s{S_T0}, 13")
    for ks in range(8):
        a(f"buffer_load_dwordx4 {vr(V_Q2+4*ks,4)}, v{V_OO}, s[{SQ}:{SQ+3}], s{S_T0} offen offset:{ks*32}")
    a(f"s_mov_b32 s{S_T}, 0")
    job_flags(a)
    a("s_waitcnt vmcnt(8)")
    a.label("L_b_loop")
    a("s_barrier")
    a(f"s_cmp_eq_u32 s{S_T}, s{S_N0}")
    a("s_cbranch_scc1 L_b_switch")
    a.label("L_b_go")
    cst(a, 0, S_T, 20)
    cst(a, 5, S_T, 21)
    dma_params(a)
    a(f"s_cmp_eq_u32 s{S_ACT}, 0")
    a("s_cbranch_scc1 L_b_inact")
    emit_ops(a, QK_OPS, 0, dma_groups())
    cst(a, 1, S_T, 20)
    ms = MSched(a, PV_OPS)
    NPRE = 4
    for i in range(NPRE):
        for x in ms.reads(i): a(x)
    a("s_nop 3")
    a(f"s_cmp_eq_u32 s{S_MSK}, 0")
    a("s_cbranch_scc1 L_b_nomask")
    a(f"s_lshl_b32 s{S_T0}, s{S_KVT}, 6")
    a(f"v_subrev_u32 v{V_DQ}, s{S_T0}, v{V_QO}")
    a(f"v_mov_b32 v{V_T}, s{S_NEGBIG}")
    for kvb in range(2):
        for r4 in range(4):
            for r in range(4):
                a(f"v_cmp_le_i32 s[{S_MK+2*r}:{S_MK+2*r+1}], {kvb*32 + 8*r4 + r}, v{V_DQ}")
            for r in range(4):
                rr = V_S + kvb*16 + r4*4 + r
                a(f"v_cndmask_b32 v{rr}, v{V_T}, v{rr}, s[{S_MK+2*r}:{S_MK+2*r+1}]")
    a.label("L_b_nomask")
    a(f"s_cmp_eq_u32 s{S_FIRST}, 1")
    a("s_cbranch_scc1 L_b_first")
    exp_block(a, V_S, None)
    a(f"v_cmp_nge_f32 vcc, s{S_THR}, v{V_SUM}")
    a("s_nop 0")
    a("s_cbranch_vccnz L_b_fallback")
    a.label("L_b_cont")
    cst(a, 2, S_T, 20)
    a(f"v_add_f32 v{V_LS}, v{V_LS}, v{V_SUM}")
    a("s_waitcnt lgkmcnt(0)")
    emit_ops(a, PV_OPS, NPRE)
    a.label("L_b_end")
    cst(a, 3, S_T, 20)
    for ks in range(8):
        a(f"v_xor_b32 v{V_KA+ks}, 0x4000, v{V_KA+ks}")
    for db in range(4):
        a(f"v_xor_b32 v{V_VA+db}, 0x4000, v{V_VA+db}")
    a(f"s_add_u32 s{S_T}, s{S_T}, 1")
    job_flags(a)
    a("s_waitcnt vmcnt(0) lgkmcnt(0)")
    cst(a, 4, S_T, 21)
    a(f"s_cmp_lt_u32 s{S_T}, {NSTEP}")
    a("s_cbranch_scc1 L_b_loop")
    a("s_nop 15")
    b_epilogue(a)
    dump(a)
    a("s_branch L_k2_end")
    a.label("L_b_inact")
    for g in dma_groups():
        for x in g: a(x)
    a("s_branch L_b_end")
    a.label("L_b_switch")
    a("s_nop 15")
    b_epilogue(a)
    a(f"s_lshl_b32 s{S_T0}, s{S_I}, 7")
    a(f"s_sub_u32 s{S_QB}, {15*128}, s{S_T0}")
    a("s_nop 1")
    b_q_addr(a, S_QB)
    for i in range(32):
        a(f"v_mov_b32 v{V_Q+i}, v{V_Q2+i}")
    b_reset(a)
    job_flags(a)
    a("s_branch L_b_go")
    def rowmax():
        a(f"v_max3_f32 v{t0}, v{V_S}, v{V_S+1}, v{V_S+2}")
        for i in range(3, 31, 2):
            a(f"v_max3_f32 v{t0}, v{t0}, v{V_S+i}, v{V_S+i+1}")
        a(f"v_max_f32 v{t0}, v{t0}, v{V_S+31}")
        a(f"v_mov_b32 v{t1}, v{t0}")
        a("s_nop 1")
        a(f"v_permlane32_swap_b32 v{t0}, v{t1}")
    a.label("L_b_first")
    a(f"s_mov_b32 s{S_FIRST}, 0")
    rowmax()
    a(f"v_max_f32 v{t0}, v{t0}, v{t1}")
    a("s_branch L_b_shift")
    a.label("L_b_fallback")
    rowmax()
    a(f"v_max3_f32 v{t0}, v{t0}, v{t1}, 0")
    a(f"v_exp_f32 v{t1}, -v{t0}")
    a("s_nop 0")
    a(f"v_mul_f32 v{V_LS}, v{V_LS}, v{t1}")
    for i in range(64):
        a(f"v_mul_f32 v{V_O+i}, v{V_O+i}, v{t1}")
    a.label("L_b_shift")
    for i in range(32):
        a(f"v_sub_f32 v{V_S+i}, v{V_S+i}, v{t0}")
    for i in range(16):
        a(f"v_sub_f32 v{V_NM+i}, v{V_NM+i}, v{t0}")
    exp_block(a, V_S, None)
    a("s_branch L_b_cont")

AQ, AK, AV, AO = 4, 8, 12, 16
A_J, A_T0, A_T1 = 21, 22, 23
A_THR, A_CL = 24, 26
A_KOFF, A_VOFF = 28, 29
a_ka, a_va, a_oo = 2, 3, 4
a_ls = 5
a_sum, a_sum2, a_t0, a_t1 = 7, 14, 15, 0
a_e = 8
a_q, a_nm, a_o, a_p, a_s, a_kf, a_vf = 16, 32, 64, 96, 128, 192, 224

def a_exp(a, blk, inserts=None):
    inserts = inserts or {}
    S, P = a_s + blk * 32, a_p + blk * 16
    for pr in range(16):
        e = a_e + (pr % 3) * 2
        a(f"v_exp_f32 v{e}, v{S+2*pr}")
        a(f"v_exp_f32 v{e+1}, v{S+2*pr+1}")
        for x in inserts.get(pr, []): a(x)
        if pr > 0:
            pe = a_e + ((pr - 1) % 3) * 2
            a(f"v_cvt_pk_bf16_f32 v{P+pr-1}, v{pe}, v{pe+1}")
            if pr == 1:
                a(f"v_mov_b32 v{a_sum}, v{pe}")
                a(f"v_mov_b32 v{a_sum2}, v{pe+1}")
            else:
                a(f"v_add_f32 v{a_sum}, v{a_sum}, v{pe}")
                a(f"v_add_f32 v{a_sum2}, v{a_sum2}, v{pe+1}")
    pe = a_e + (15 % 3) * 2
    a("s_nop 0")
    a(f"v_cvt_pk_bf16_f32 v{P+15}, v{pe}, v{pe+1}")
    a(f"v_add_f32 v{a_sum}, v{a_sum}, v{pe}")
    a(f"v_add_f32 v{a_sum2}, v{a_sum2}, v{pe+1}")
    a("s_nop 0")
    a(f"v_add_f32 v{a_sum}, v{a_sum}, v{a_sum2}")

def a_qk(blk, kb):
    out = []
    for ks in range(2):
        for kvb in range(2):
            f = a_kf + kb * 16 + (kvb * 2 + ks) * 4
            d = vr(a_s + blk * 32 + kvb * 16, 16)
            c = d if ks else vr(a_nm + blk * 16, 16)
            out.append(f"v_mfma_f32_32x32x16_bf16 {d}, {vr(f,4)}, {vr(a_q+blk*8+4*ks,4)}, {c}")
    return out
def a_pv(blk, vb):
    o = vr(a_o + blk * 16, 16)
    return [f"v_mfma_f32_32x32x16_bf16 {o}, {vr(a_vf+vb*16+4*s,4)}, {vr(a_p+blk*16+4*s,4)}, {o}" for s in range(4)]
def a_kload(kb):
    return [f"buffer_load_dwordx4 {vr(a_kf+kb*16+(kvb*2+ks)*4,4)}, v{a_ka}, s[{AK}:{AK+3}], s{A_KOFF} offen offset:{kvb*2048+ks*32}"
            for kvb in range(2) for ks in range(2)] + [f"s_add_u32 s{A_KOFF}, s{A_KOFF}, 4096"]
def a_vload(vb):
    return [f"buffer_load_dwordx4 {vr(a_vf+vb*16+4*s,4)}, v{a_va}, s[{AV}:{AV+3}], s{A_VOFF} offen offset:{s*32}"
            for s in range(4)] + [f"s_add_u32 s{A_VOFF}, s{A_VOFF}, 128"]

def gen_a(a):
    a.label("L_a_start")
    a("s_lshl_b32 s65, s2, 15")
    make_srd(a, 60, IN_B_WO, 0, 65, 4096*1024*2)
    a("s_lshl_b32 s65, s2, 13")
    make_srd(a, 52, IN_A_WO, 0, 65, 1024*1024*2)
    make_srd(a, AQ, D_WS, WS_QA, None, WS_QA + 2048*1024*2)
    make_srd(a, AK, D_WS, WS_KA, None, WS_KA + 2048*32*2)
    make_srd(a, AV, D_WS, WS_VA, None, WS_VA + 2048*32*2)
    make_srd(a, AO, D_WS, WS_OA, None, WS_OA + 2048*1024*2)
    a(f"s_lshl_b32 s{A_T0}, s2, 2")
    a(f"s_add_u32 s{A_T0}, s{A_T0}, s{S_W}")
    a(f"s_sub_u32 s{A_T0}, s{A_T0}, 4")
    a(f"s_lshl_b32 s{A_T0}, s{A_T0}, 6")
    a(f"v_and_b32 v{a_t0}, 31, v{V_L}")
    a(f"v_lshrrev_b32 v{a_sum}, 5, v{V_L}")
    a(f"v_add_u32 v{a_sum2}, s{A_T0}, v{a_t0}")
    a(f"v_lshlrev_b32 v{a_oo}, 6, v{a_sum2}")
    a(f"v_lshl_add_u32 v{a_oo}, v{a_sum}, 4, v{a_oo}")
    for blk in range(2):
        for ks in range(2):
            a(f"buffer_load_dwordx4 {vr(a_q+blk*8+4*ks,4)}, v{a_oo}, s[{AQ}:{AQ+3}], 0 offen offset:{blk*2048+ks*32}")
    a(f"v_lshlrev_b32 v{a_ka}, 6, v{a_t0}")
    a(f"v_lshl_add_u32 v{a_ka}, v{a_sum}, 4, v{a_ka}")
    a(f"v_lshlrev_b32 v{a_va}, 12, v{a_t0}")
    a(f"v_lshl_add_u32 v{a_va}, v{a_sum}, 4, v{a_va}")
    a(f"s_mov_b32 s{A_KOFF}, 0")
    a(f"s_mov_b32 s{A_VOFF}, 0")
    for x in a_kload(0) + a_kload(1) + a_vload(0): a(x)
    a(f"s_sub_u32 s{A_T0}, s{S_W}, 4")
    a(f"s_lshl_b32 s{A_T0}, s{A_T0}, 10")
    a(f"v_lshlrev_b32 v{a_t0}, 4, v{V_L}")
    a(f"v_add_u32 v{a_t0}, s{A_T0}, v{a_t0}")
    for i in range(32):
        a(f"v_mov_b32 v{a_nm+i}, 0")
        a(f"v_mov_b32 v{a_o+i}, 0")
    for i in range(16):
        a(f"v_mov_b32 v{a_p+16+i}, 0")
        a(f"v_mov_b32 v{a_vf+16+i}, 0")
    a(f"v_mov_b32 v{a_ls}, 0")
    a(f"v_mov_b32 v{a_ls+1}, 0")
    for b in range(2):
        a(f"s_mov_b32 s{A_THR+b}, 0xbf800000")
        a(f"s_mov_b32 s{A_CL+b}, 0xff800000")
    a(f"s_mov_b32 s{A_J}, 0")
    a("s_waitcnt vmcnt(0)")
    for x in a_qk(0, 0): a(x)
    for i in range(8):
        a(f"s_mov_b32 s66, {i*4096}")
        a(f"buffer_load_dwordx4 {vr(a_s+32,4)}, v{a_t0}, s[60:63], s66 offen")
    for i in range(2):
        a(f"s_mov_b32 s66, {i*4096}")
        a(f"buffer_load_dwordx4 {vr(a_s+32,4)}, v{a_t0}, s[52:55], s66 offen")
    a("s_waitcnt vmcnt(0)")
    a.label("L_a_loop")
    fbs = []
    def check(blk):
        fb = a.newlabel("afb"); cont = a.newlabel("acont")
        fbs.append((fb, cont, blk))
        a(f"v_cmp_nge_f32 vcc, s{A_THR+blk}, v{a_sum}")
        a("s_nop 0")
        a(f"s_cbranch_vccnz {fb}")
        a.label(cont)
        a(f"v_add_f32 v{a_ls+blk}, v{a_ls+blk}, v{a_sum}")
    for par in range(2):
        a("s_barrier")
        if par == 0: cst(a, 0, A_J, 20)
        else: cst(a, 3, A_J, 20)
        a_exp(a, 0)
        check(0)
        if par == 0: cst(a, 1, A_J, 20)
        a("s_waitcnt vmcnt(0)")
        for x in a_qk(1, par) + a_pv(1, par ^ 1) + a_pv(0, par) + a_qk(0, par ^ 1): a(x)
        ins = {}
        ld = a_kload(par) + a_vload(par ^ 1)
        for i, x in enumerate(ld):
            ins.setdefault(i, []).append(x)
        a_exp(a, 1, ins)
        check(1)
        if par == 0: cst(a, 2, A_J, 20)
    a(f"s_add_u32 s{A_J}, s{A_J}, 2")
    a(f"s_cmp_lt_u32 s{A_J}, 32")
    a("s_cbranch_scc1 L_a_loop")
    for x in a_pv(1, 1): a(x)
    a("s_barrier")
    a("s_barrier")
    a("s_nop 15")
    for blk in range(2):
        O = a_o + blk * 16
        t = a_p + blk * 16
        a(f"v_mov_b32 v{a_t0}, v{a_ls+blk}")
        a(f"v_mov_b32 v{a_t1}, v{a_ls+blk}")
        a("s_nop 1")
        a(f"v_permlane32_swap_b32 v{a_t0}, v{a_t1}")
        a(f"v_add_f32 v{a_t0}, v{a_t0}, v{a_t1}")
        a(f"v_rcp_f32 v{a_t0}, v{a_t0}")
        a("s_nop 0")
        for i in range(16):
            a(f"v_mul_f32 v{O+i}, v{a_t0}, v{O+i}")
        for q in range(4):
            a(f"v_cvt_pk_bf16_f32 v{t+2*q}, v{O+4*q}, v{O+4*q+1}")
            a(f"v_cvt_pk_bf16_f32 v{t+2*q+1}, v{O+4*q+2}, v{O+4*q+3}")
        a("s_nop 1")
        for q in (0, 2):
            a(f"v_permlane32_swap_b32 v{t+2*q}, v{t+2*q+2}")
            a(f"v_permlane32_swap_b32 v{t+2*q+1}, v{t+2*q+3}")
        for q in (0, 2):
            a(f"buffer_store_dwordx4 {vr(t+2*q,4)}, v{a_oo}, s[{AO}:{AO+3}], 0 offen offset:{blk*2048+q*16}")
    dump(a)
    a("s_branch L_k2_end")
    for blk in range(2):
        S = a_s + blk * 32
        a.label(f"L_a_fb{blk}")
        a("s_nop 15")
        a(f"v_max3_f32 v{a_t0}, v{S}, v{S+1}, v{S+2}")
        for i in range(3, 31, 2):
            a(f"v_max3_f32 v{a_t0}, v{a_t0}, v{S+i}, v{S+i+1}")
        a(f"v_max_f32 v{a_t0}, v{a_t0}, v{S+31}")
        a(f"v_mov_b32 v{a_t1}, v{a_t0}")
        a("s_nop 1")
        a(f"v_permlane32_swap_b32 v{a_t0}, v{a_t1}")
        a(f"v_max3_f32 v{a_t0}, v{a_t0}, v{a_t1}, s{A_CL+blk}")
        a(f"v_max_f32 v{a_t1}, 0, v{a_t0}")
        a(f"v_exp_f32 v{a_t1}, -v{a_t1}")
        for i in range(32):
            a(f"v_sub_f32 v{S+i}, v{S+i}, v{a_t0}")
        for i in range(16):
            a(f"v_sub_f32 v{a_nm+blk*16+i}, v{a_nm+blk*16+i}, v{a_t0}")
            a(f"v_mul_f32 v{a_o+blk*16+i}, v{a_o+blk*16+i}, v{a_t1}")
        a(f"v_mul_f32 v{a_ls+blk}, v{a_ls+blk}, v{a_t1}")
        a(f"s_mov_b32 s{A_THR+blk}, 0x{f32bits(THR):x}")
        a(f"s_mov_b32 s{A_CL+blk}, 0")
        a_exp(a, blk)
        a("s_setpc_b64 s[30:31]")
    for fb, cont, blk in fbs:
        a.label(fb)
        a("s_getpc_b64 s[30:31]")
        lab = a.newlabel("pc")
        a.label(lab)
        a(f"s_add_u32 s30, s30, {cont}-{lab}")
        a(f"s_addc_u32 s31, s31, -1")
        a(f"s_branch L_a_fb{blk}")

def gen_k2(a):
    name = "k2_attn_kernel"
    kernel_header(a, name)
    tl_start(a)
    load_ptrs(a)
    a("s_cmp_ge_u32 s2, 256")
    a("s_cbranch_scc1 L_k2_end")
    a(f"v_and_b32 v{V_L}, 63, v0")
    a(f"v_lshrrev_b32 v{V_T}, 6, v0")
    a("s_nop 0")
    a(f"v_readfirstlane_b32 s{S_W}, v{V_T}")
    a("s_waitcnt lgkmcnt(0)")
    a("s_nop 3")
    a(f"s_cmp_ge_u32 s{S_W}, 4")
    a("s_cbranch_scc1 L_a_start")
    gen_b(a)
    gen_a(a)
    a.label("L_k2_end")
    tl_end(a, 1)
    a("s_endpgm")
    return name, (256, 512, 65536)
```

```python
import os
from common import *
import gemm, gemm5
from gemm import (S_X, S_W, S_C, S_LDX, S_LDW, S_LDC, S_NS, S_SCALE, S_WAVE, S_KX, S_KW, S_WSTEP, S_CNT, S_M0B, S_T0, S_T1,
                  V_LANE, V_XD, V_WD, V_XA, V_WA, V_C, V_T)
S_TILE, S_TYPE, S_MT, S_NT, S_JOB = 60, 61, 62, 63, 64
S_P = 68
S_D = 72
S_U0, S_U1 = 76, 77
KSPLIT = int(os.environ.get("KSPLIT", "44"))

def store_block(a, src, soff):
    t = 56
    for q in range(4):
        a(f"v_cvt_pk_bf16_f32 v{t+2*q}, v{src+4*q}, v{src+4*q+1}")
        a(f"v_cvt_pk_bf16_f32 v{t+2*q+1}, v{src+4*q+2}, v{src+4*q+3}")
    a("s_nop 1")
    for q in (0, 2):
        a(f"v_permlane32_swap_b32 v{t+2*q}, v{t+2*q+2}")
        a(f"v_permlane32_swap_b32 v{t+2*q+1}, v{t+2*q+3}")
    for q in (0, 2):
        a(f"buffer_store_dwordx4 {vr(t+2*q,4)}, v{V_C}, s[{S_C}:{S_C+3}], s{soff} offen offset:{q*16}")

def gen_k3(a):
    name = "k3_out_kernel"
    kernel_header(a, name)
    c = gemm5.Cfg5()
    tl_start(a)
    load_ptrs(a)
    a("s_cmp_ge_u32 s2, 256")
    a("s_cbranch_scc1 L_k3_end")
    a("s_waitcnt lgkmcnt(0)")
    a(f"s_and_b32 s{S_U0}, s2, 7")
    a(f"s_lshr_b32 s{S_U1}, s2, 3")
    a(f"s_and_b32 s{S_TYPE}, s{S_U0}, 1")
    a(f"s_lshr_b32 s{S_MT}, s{S_U0}, 1")
    a(f"s_lshl_b32 s{S_MT}, s{S_MT}, 2")
    a(f"s_and_b32 s{S_NT}, s{S_U1}, 3")
    a(f"s_add_u32 s{S_MT}, s{S_MT}, s{S_NT}")
    a(f"s_lshr_b32 s{S_NT}, s{S_U1}, 2")
    a(f"s_lshl_b32 s{S_TILE}, s{S_NT}, 4")
    a(f"s_add_u32 s{S_TILE}, s{S_TILE}, s{S_MT}")
    a(f"s_mov_b32 s{S_LDW}, {1024*2}")
    a(f"s_mov_b32 s{S_LDC}, {2048*2}")
    a(f"s_cmp_eq_u32 s{S_TYPE}, 1")
    a("s_cbranch_scc0 L_k3_jobB")
    a(f"s_mov_b32 s{S_JOB}, 0")
    a(f"s_mul_i32 s{S_U0}, s{S_MT}, {128*1024*2}")
    make_srd(a, S_X, D_WS, WS_OA, S_U0, WS_OA + 2048*1024*2)
    a(f"s_mul_i32 s{S_U0}, s{S_NT}, {128*2}")
    make_srd(a, S_W, IN_A_WO, 0, S_U0, 1024*1024*2)
    a(f"s_mul_i32 s{S_U0}, s{S_MT}, {128*2048*2}")
    a(f"s_mul_i32 s{S_U1}, s{S_NT}, {128*2}")
    a(f"s_add_u32 s{S_U0}, s{S_U0}, s{S_U1}")
    make_srd(a, S_C, D_OUT, 0, S_U0, 2048*2048*2)
    a(f"s_mov_b32 s{S_LDX}, {1024*2}")
    a(f"s_mov_b32 s{S_NS}, 16")
    a("s_branch L_k3_gemm")
    a.label("L_k3_jobB")
    a(f"s_mov_b32 s{S_JOB}, 1")
    a(f"s_mul_i32 s{S_U1}, s{S_TYPE}, {KSPLIT*64}")
    a(f"s_mul_i32 s{S_U0}, s{S_MT}, {128*4096*2}")
    a(f"s_lshl_b32 s{S_T0}, s{S_U1}, 1")
    a(f"s_add_u32 s{S_U0}, s{S_U0}, s{S_T0}")
    make_srd(a, S_X, D_WS, WS_OB, S_U0, WS_OB + 2048*4096*2)
    a(f"s_mul_i32 s{S_U0}, s{S_NT}, {128*2}")
    a(f"s_lshl_b32 s{S_T0}, s{S_U1}, 11")
    a(f"s_add_u32 s{S_U0}, s{S_U0}, s{S_T0}")
    make_srd(a, S_W, IN_B_WO, 0, S_U0, 4096*1024*2)
    a(f"s_mul_i32 s{S_U0}, s{S_MT}, {128*2048*2}")
    a(f"s_mul_i32 s{S_U1}, s{S_NT}, {128*2}")
    a(f"s_add_u32 s{S_U0}, s{S_U0}, s{S_U1}")
    make_srd(a, S_C, D_OUT, 1024*2, S_U0, 2048*2048*2)
    a(f"s_mov_b32 s{S_LDX}, {4096*2}")
    a(f"s_cmp_eq_u32 s{S_TYPE}, 1")
    a(f"s_cselect_b32 s{S_NS}, {64-KSPLIT}, {KSPLIT}")
    a.label("L_k3_gemm")
    gemm.stamp(a, 0)
    gemm.gemm_setup(a, c)
    gemm5.pf_setup(a, S_MT, S_NT)
    gemm5.main(a, c, "k3")
    a.label("L_k3_epi")
    gemm.stamp(a, 1)
    gemm5.inwg_reduce(a)
    a(f"s_lshr_b32 s{S_U0}, s{S_WAVE}, 2")
    a(f"s_lshl_b32 s{S_U0}, s{S_U0}, 6")
    a(f"s_add_u32 s{S_U1}, s{S_U0}, {32*2048*2}")
    a(f"s_cmp_eq_u32 s{S_JOB}, 0")
    a("s_cbranch_scc0 L_k3_epiB")
    store_block(a, 96, S_U0)
    store_block(a, 112, S_U1)
    a("s_barrier")
    a("s_branch L_k3_jobB")
    a.label("L_k3_epiB")
    a(f"s_lshl_b32 s{S_T0}, s{S_TILE}, 16")
    make_srd(a, S_P, D_WS, WS_PART, S_T0, WS_PART + 128*2*32768)
    make_srd(a, S_D, D_DBG, 0, None, 256)
    VP = V_XD
    a(f"s_lshl_b32 s{S_T0}, s{S_WAVE}, 12")
    a(f"v_lshlrev_b32 v{VP}, 4, v{V_LANE}")
    a(f"v_add_u32 v{VP}, s{S_T0}, v{VP}")
    a(f"s_cmp_eq_u32 s{S_TYPE}, 0")
    a("s_cbranch_scc0 L_k3_t1")
    a(f"s_mov_b32 s{S_T0}, 32768")
    for i in range(4):
        a(f"buffer_store_dwordx4 {vr(112+4*i,4)}, v{VP}, s[{S_P}:{S_P+3}], s{S_T0} offen offset:{i*1024} sc1")
    a("s_branch L_k3_sent")
    a.label("L_k3_t1")
    a(f"s_mov_b32 s{S_T0}, 0")
    for i in range(4):
        a(f"buffer_store_dwordx4 {vr(96+4*i,4)}, v{VP}, s[{S_P}:{S_P+3}], s{S_T0} offen offset:{i*1024} sc1")
    a("s_nop 1")
    for i in range(16):
        a(f"v_mov_b32 v{96+i}, v{112+i}")
    a(f"s_mov_b32 s{S_U0}, s{S_U1}")
    a.label("L_k3_sent")
    a("s_waitcnt vmcnt(0)")
    a("s_barrier")
    gemm.stamp(a, 2)
    a(f"s_cmp_eq_u32 s{S_WAVE}, 0")
    a("s_cbranch_scc0 L_k3_wait")
    a(f"s_lshr_b32 s{S_T0}, s{S_TILE}, 1")
    a(f"s_lshl_b32 s{S_T0}, s{S_T0}, 2")
    a(f"s_and_b32 s{S_T1}, s{S_TILE}, 1")
    a(f"s_lshl_b32 s{S_T1}, s{S_T1}, 4")
    a(f"v_mov_b32 v{V_T}, s{S_T0}")
    a(f"s_lshl_b32 s{S_T0}, 1, s{S_T1}")
    a(f"v_mov_b32 v{V_T+1}, s{S_T0}")
    a("s_mov_b64 s[78:79], exec")
    a("s_mov_b64 exec, 1")
    a(f"buffer_atomic_add v{V_T+1}, v{V_T}, s[{S_D}:{S_D+3}], 0 offen")
    a("s_waitcnt vmcnt(0)")
    a.label("L_k3_poll")
    a(f"buffer_load_dword v{V_T+2}, v{V_T}, s[{S_D}:{S_D+3}], 0 offen sc1")
    a("s_waitcnt vmcnt(0)")
    a(f"v_readfirstlane_b32 s{S_T0}, v{V_T+2}")
    a("s_nop 3")
    a(f"s_lshr_b32 s{S_T0}, s{S_T0}, s{S_T1}")
    a(f"s_and_b32 s{S_T0}, s{S_T0}, 0xffff")
    a(f"s_cmp_ge_u32 s{S_T0}, 2")
    a("s_cbranch_scc1 L_k3_polldone")
    a("s_sleep 2")
    a("s_branch L_k3_poll")
    a.label("L_k3_polldone")
    a("s_mov_b64 exec, s[78:79]")
    a.label("L_k3_wait")
    a("s_barrier")
    gemm.stamp(a, 4)
    a(f"s_lshl_b32 s{S_T0}, s{S_TYPE}, 15")
    for i in range(4):
        a(f"buffer_load_dwordx4 {vr(24+4*i,4)}, v{VP}, s[{S_P}:{S_P+3}], s{S_T0} offen offset:{i*1024} sc1")
    a("s_waitcnt vmcnt(0)")
    for i in range(16):
        a(f"v_add_f32 v{96+i}, v{96+i}, v{24+i}")
    store_block(a, 96, S_U0)
    if gemm.PROF:
        a("s_waitcnt vmcnt(0)")
    gemm.stamp(a, 3)
    gemm.dump_stamps(a, 5, int(gemm.PROF) if gemm.PROF else 0, 2)
    a.label("L_k3_end")
    tl_end(a, 2)
    a("s_endpgm")
    return name, (256, 512, c.LDS)
```

```python
import sys
from common import *
import k1
OUT = "concat_heads__grouped_kv_mqa__compressed_kv_cla__prompt.s"
def build(out=OUT, which=("k1",)):
    a = Asm()
    kernels = []
    if "k1" in which:
        kernels.append(k1.gen_k1(a))
    if "k2" in which:
        import os
        if os.environ.get("K2OLD"):
            import k2
            kernels.append(k2.gen_k2(a))
        else:
            import k2v2
            kernels.append(k2v2.gen_k2(a))
    if "k3" in which:
        import k3
        kernels.append(k3.gen_k3(a))
    hdr = open("concat_heads__grouped_kv_mqa__compressed_kv_cla__prompt.s.ref").read().split("; Override launch")[0]
    s = hdr
    for name, (g, b, lds) in kernels:
        s += f"; @launch kernel={name} grid=({g},1,1) block=({b},1,1) lds={lds}\n"
    s += '.amdgcn_target "amdgcn-amd-amdhsa--gfx950"\n.text\n'
    s += a.text()
    s += '.section .rodata,"a"\n'
    for name, _ in kernels:
        s += kernel_desc(name)
    open(out, "w").write(s)
    print("wrote", out, len(s), "bytes")
if __name__ == "__main__":
    build(which=sys.argv[1:] or ("k1", "k2", "k3"))
```

```python
from common import *
import gemm
import os
from gemm import (V_PF, V_PFD, S_PF, S_X, S_W, S_C, S_LDX, S_LDW, S_LDC, S_NS, S_SCALE, S_WAVE, S_KX, S_KW, S_WSTEP, S_CNT, S_M0B, S_T0, S_T1,
                  V_LANE, V_XD, V_WD, V_XA, V_WA, V_C, V_T, interleave)

NB5 = int(os.environ.get('NB5', '4'))
V_XA2, V_WA2 = 88, 92
class Cfg5:
    def __init__(self):
        self.BM, self.BN, self.WM, self.WN = 128, 128, 2, 2
        self.TM, self.TN = 64, 64
        self.MBK, self.NBK = 2, 2
        self.XSLOT = 128 * 128
        self.WSLOT = 64 * 128 * 2
        self.WBASE = NB5 * self.XSLOT
        self.LDS = NB5 * (self.XSLOT + self.WSLOT)
        self.NXD, self.NWD = 2, 2

V_FR = 24
V_ACC = 128
def xf(ks, mb): return V_FR + (ks * 2 + mb) * 4
def wf(ks, nb): return V_FR + 32 + (ks * 2 + nb) * 4
def acc(nb, mb): return V_ACC + (nb * 2 + mb) * 16

def dma_list(c, b, group=None):
    out = []
    for u in range(c.NXD):
        out.append([f"s_add_u32 m0, s{S_M0B}, 0x{b*c.XSLOT + u*8192:x}", "s_nop 0",
                    f"buffer_load_dwordx4 v{V_XD+u}, s[{S_X}:{S_X+3}], s{S_KX} offen lds"])
    for u in range(c.NWD):
        out.append([f"s_add_u32 m0, s{S_M0B}, 0x{c.WBASE + b*c.WSLOT + u*8192:x}", "s_nop 0",
                    f"buffer_load_dwordx4 v{V_WD+u}, s[{S_W}:{S_W+3}], s{S_KW} offen lds"])
    out[-1] = out[-1] + (pf(group) if (group is not None and USE_PF) else []) + [f"s_add_u32 s{S_KX}, s{S_KX}, 128", f"s_add_u32 s{S_KW}, s{S_KW}, s{S_WSTEP}"]
    return out

PD5 = int(os.environ.get("PD5", "3"))
USE_PF = False
def pf_setup(a, s_mq, s_nq):
    t0, t1, t2, t3 = V_T, V_T + 1, V_T + 2, V_T + 3
    L = V_LANE
    a(f"s_and_b32 s{S_T0}, s{S_WAVE}, 3")
    a(f"s_and_b32 s{S_T1}, s{s_nq}, 7")
    a(f"s_lshl_b32 s{S_T1}, s{S_T1}, 4")
    a(f"s_lshl_b32 s{S_PF}, s{S_T0}, 2")
    a(f"s_add_u32 s{S_T1}, s{S_T1}, s{S_PF}")
    a(f"v_add_u32 v{t1}, s{S_T1}, v{L}")
    a(f"v_mul_lo_u32 v{t1}, v{t1}, s{S_LDX}")
    a(f"s_and_b32 s{S_T1}, s{s_mq}, 3")
    a(f"s_lshl_b32 s{S_T1}, s{S_T1}, 5")
    a(f"s_lshl_b32 s{S_PF}, s{S_T0}, 3")
    a(f"s_add_u32 s{S_T1}, s{S_T1}, s{S_PF}")
    a(f"v_add_u32 v{t0}, s{S_T1}, v{L}")
    a(f"v_lshrrev_b32 v{t2}, 1, v{t0}")
    a(f"v_mul_lo_u32 v{t2}, v{t2}, s{S_LDW}")
    a(f"v_and_b32 v{t3}, 1, v{t0}")
    a(f"v_lshl_add_u32 v{t2}, v{t3}, 7, v{t2}")
    a(f"s_cmp_ge_u32 s{S_WAVE}, 4")
    a(f"s_cselect_b64 vcc, -1, 0")
    a(f"v_cndmask_b32 v{V_PF}, v{t1}, v{t2}, vcc")
    a(f"s_cselect_b32 s{S_T1}, 8, 4")
    a(f"v_mov_b32 v{t1}, 0x7f000000")
    a(f"v_cmp_gt_u32 vcc, s{S_T1}, v{L}")
    a("s_nop 1")
    a(f"v_cndmask_b32 v{V_PF}, v{t1}, v{V_PF}, vcc")
def pf(group):
    if group == 0:
        return [f"s_add_u32 s{S_PF}, s{S_KX}, {PD5*128}", f"buffer_load_dword v{V_PFD}, v{V_PF}, s[{S_X}:{S_X+3}], s{S_PF} offen"]
    return [f"s_mul_i32 s{S_PF}, s{S_WSTEP}, {PD5}", f"s_add_u32 s{S_PF}, s{S_PF}, s{S_KW}", f"buffer_load_dword v{V_PFD}, v{V_PF}, s[{S_W}:{S_W+3}], s{S_PF} offen"]

def setup2(a):
    for ks in range(4):
        a(f"v_add_u32 v{V_XA2+ks}, 0x10000, v{V_XA+ks}")
    for nb in range(2):
        a(f"v_add_u32 v{V_WA2+nb}, 0x10000, v{V_WA+nb}")

def reads(a, c, b):
    xa, wa, bb = (V_XA, V_WA, b) if b < 4 else (V_XA2, V_WA2, b - 4)
    for ks in range(4):
        for nb in range(2):
            for t in range(2):
                off = bb * c.WSLOT + (ks * 16 + t * 4) * c.BN * 2
                a(f"ds_read_b64_tr_b16 {vr(wf(ks,nb)+2*t,2)}, v{wa+nb} offset:{off}")
        for mb in range(2):
            a(f"ds_read_b128 {vr(xf(ks,mb),4)}, v{xa+ks} offset:{bb*c.XSLOT + mb*4096}")

def mfmas():
    out = []
    for ks in range(4):
        for mb in range(2):
            for nb in range(2):
                d = vr(acc(nb, mb), 16)
                out.append(f"v_mfma_f32_32x32x16_bf16 {d}, {vr(wf(ks,nb),4)}, {vr(xf(ks,mb),4)}, {d}")
    return out

def cond(a, add, yes, no):
    sk = a.newlabel("n"); dn = a.newlabel("d")
    a(f"s_add_u32 s{S_T0}, s{S_CNT}, {add}")
    a(f"s_cmp_lt_u32 s{S_T0}, s{S_NS}")
    a(f"s_cbranch_scc0 {sk}")
    yes()
    a(f"s_branch {dn}")
    a.label(sk)
    no()
    a.label(dn)

def main(a, c, tag):
    ml = mfmas()
    D = NB5 - 1
    W = 4 * (D - 1)
    Lg1, Lepi = f"L_{tag}_g1", f"L_{tag}_epi"
    def emit(groups):
        for g in groups:
            for s in g: a(s)
    setup2(a)
    for b in range(D):
        emit(dma_list(c, b))
    for i in range(64):
        a(f"v_mov_b32 v{V_ACC+i}, 0")
    a(f"s_mov_b32 s{S_CNT}, 0")
    a(f"s_waitcnt vmcnt({W})")
    a("s_barrier")
    a(f"s_cmp_ge_u32 s{S_WAVE}, 4")
    a(f"s_cbranch_scc1 {Lg1}")
    def Lphase(b):
        dg = dma_list(c, (b + D) % NB5)
        def y():
            reads(a, c, b); emit(dg); a(f"s_waitcnt vmcnt({W}) lgkmcnt(0)")
        def n():
            reads(a, c, b); a("s_waitcnt vmcnt(0) lgkmcnt(0)")
        cond(a, D, y, n)
        a("s_barrier")
        a(f"s_add_u32 s{S_CNT}, s{S_CNT}, 1")
    def Cphase(bt):
        dg = dma_list(c, (bt + D) % NB5)
        def y():
            interleave(a, ml, dg, 4, 1); a(f"s_waitcnt vmcnt({W})")
        def n():
            for m in ml: a(m)
            a("s_waitcnt vmcnt(0)")
        cond(a, D, y, n)
        a("s_barrier")
        a(f"s_add_u32 s{S_CNT}, s{S_CNT}, 1")
    period = NB5 if NB5 % 2 else NB5 // 2
    Ll = f"L_{tag}_g0loop"
    a.label(Ll)
    for k in range(period):
        b = (2 * k) % NB5
        Lphase(b)
        Cphase((b + 1) % NB5)
        a(f"s_cmp_ge_u32 s{S_CNT}, s{S_NS}")
        a(f"s_cbranch_scc1 L_{tag}_g0end")
    a(f"s_branch {Ll}")
    a.label(f"L_{tag}_g0end")
    a("s_barrier")
    a(f"s_branch {Lepi}")
    a.label(Lg1)
    emit(dma_list(c, D % NB5))
    a(f"s_waitcnt vmcnt({W})")
    a("s_barrier")
    a(f"s_add_u32 s{S_CNT}, s{S_CNT}, 1")
    Ll = f"L_{tag}_g1loop"
    a.label(Ll)
    for k in range(period):
        b = (2 * k + 1) % NB5
        Lphase(b)
        Cphase((b + 1) % NB5)
        a(f"s_cmp_gt_u32 s{S_CNT}, s{S_NS}")
        a(f"s_cbranch_scc1 {Lepi}")
    a(f"s_branch {Ll}")

def inwg_reduce(a):
    t0 = V_T
    a(f"s_lshl_b32 s{S_T0}, s{S_WAVE}, 13")
    a(f"v_lshlrev_b32 v{t0}, 4, v{V_LANE}")
    a(f"v_add_u32 v{t0+1}, s{S_T0}, v{t0}")
    a(f"s_xor_b32 s{S_T0}, s{S_T0}, 0x8000")
    a(f"v_add_u32 v{t0+2}, s{S_T0}, v{t0}")
    a("s_nop 7")
    a("s_nop 3")
    l1 = a.newlabel("r1"); l2 = a.newlabel("r2")
    a(f"s_cmp_ge_u32 s{S_WAVE}, 4")
    a(f"s_cbranch_scc1 {l1}")
    for i in range(8):
        a(f"ds_write_b128 v{t0+1}, {vr(V_ACC+32+4*i,4)} offset:{i*1024}")
    for i in range(32):
        a(f"v_mov_b32 v{96+i}, v{V_ACC+i}")
    a(f"s_branch {l2}")
    a.label(l1)
    for i in range(8):
        a(f"ds_write_b128 v{t0+1}, {vr(V_ACC+4*i,4)} offset:{i*1024}")
    for i in range(32):
        a(f"v_mov_b32 v{96+i}, v{V_ACC+32+i}")
    a.label(l2)
    a("s_waitcnt lgkmcnt(0)")
    a("s_barrier")
    for i in range(8):
        a(f"ds_read_b128 {vr(24+4*i,4)}, v{t0+2} offset:{i*1024}")
    a("s_waitcnt lgkmcnt(0)")
    for i in range(32):
        a(f"v_add_f32 v{96+i}, v{96+i}, v{24+i}")
```

```python
from common import *
import os
import k2
from k2 import (SQ, SK, SV, SO, S_W, S_G, S_I, S_N0, S_T, S_KVT, S_QMIN, S_ACT, S_MSK, S_KM0, S_VM0, S_T0, S_T1, S_THR,
                S_HOFF, S_QB, S_NEGBIG, S_T2, S_VSRC, S_KSRC, S_FIRST, S_MK, S_OFF,
                V_L, V_KD, V_VD, V_KA, V_VA, V_M, V_LS, V_SUM, V_T, V_OO, V_DQ, V_QO, V_Q, V_S, V_P, V_F, V_E, V_O, V_NM, V_Q2,
                NEG_BIG, THR, PV_OPS, QK_OPS, MSched, kvt_of, b_q_addr, b_q_loads, b_reset, b_epilogue, exp_block, dma_groups)
NSTEP = 34
KPRE = 4
PROF = os.environ.get("V2PROF")
def cst(a, idx, sreg, val):
    if not PROF: return
    lab = a.newlabel("cs")
    a(f"s_cmp_eq_u32 s{sreg}, {val}")
    a(f"s_cbranch_scc0 {lab}")
    a(f"s_memtime s[{70+2*idx}:{71+2*idx}]")
    a.label(lab)
def dump(a):
    if not PROF: return
    lab = a.newlabel("nodump")
    a("s_waitcnt lgkmcnt(0) vmcnt(0)")
    a(f"s_cmp_eq_u32 s2, {PROF}")
    a(f"s_cbranch_scc0 {lab}")
    make_srd(a, 92, D_DBG, 0, None, 256)
    a(f"s_mul_i32 s96, s{S_W}, 32")
    a("v_mov_b32 v17, s96")
    for i in range(8):
        a(f"s_sub_u32 s97, s{70+2*i}, s70")
        a("v_mov_b32 v18, s97")
        a(f"buffer_store_dword v18, v17, s[92:95], 0 offen offset:{4*i}")
    a.label(lab)

def job_flags(a):
    kvt_of(a, S_KVT, S_T)
    a(f"s_lshl_b32 s{S_T0}, s{S_KVT}, 6")
    a(f"s_add_u32 s{S_T1}, s{S_QMIN}, 31")
    a(f"s_cmp_le_u32 s{S_T0}, s{S_T1}")
    a(f"s_cselect_b32 s{S_ACT}, 1, 0")
    a(f"s_add_u32 s{S_T0}, s{S_T0}, 63")
    a(f"s_cmp_gt_u32 s{S_T0}, s{S_QMIN}")
    a(f"s_cselect_b32 s{S_MSK}, 1, 0")

def dma_params(a):
    a(f"s_add_u32 s{S_T0}, s{S_T}, 2")
    kvt_of(a, S_T1, S_T0)
    a(f"s_lshl_b32 s{S_T1}, s{S_T1}, 19")
    a(f"s_cmp_ge_u32 s{S_T0}, {NSTEP}")
    a(f"s_cselect_b32 s{S_VSRC}, 0x7f000000, s{S_T1}")
    a(f"s_mov_b32 s{S_KSRC}, s{S_VSRC}")

S_DSLOT, S_RSLOT, S_DELTA = 21, 22, 29
VOFF = 49152
def dma_groups3():
    out = []
    for which in ("V", "K"):
        srd, vreg, sm0, ssrc = (SK, V_KD, S_KM0, S_KSRC) if which == "K" else (SV, V_VD, S_VM0, S_VSRC)
        for u in range(4):
            g = [f"s_add_u32 m0, s{sm0}, {u*4096}", "s_nop 0",
                 f"buffer_load_dwordx4 v{vreg}, s[{srd}:{srd+3}], s{ssrc} offen lds"]
            if u < 3:
                g.append(f"s_add_u32 s{ssrc}, s{ssrc}, {16*8192}")
            out.append(g)
    out[-1] = out[-1] + [f"s_add_u32 s{S_DSLOT}, s{S_DSLOT}, 1", f"s_cmp_eq_u32 s{S_DSLOT}, 3",
                         f"s_cselect_b32 s{S_DSLOT}, 0, s{S_DSLOT}", f"s_cselect_b32 s{S_DELTA}, -2, 1", f"s_lshl_b32 s{S_DELTA}, s{S_DELTA}, 14",
                         f"s_add_u32 s{S_KM0}, s{S_KM0}, s{S_DELTA}", f"s_add_u32 s{S_VM0}, s{S_VM0}, s{S_DELTA}"]
    return out
class MS3(MSched):
    def reads(self, i):
        r = super().reads(i)
        return [x.replace("offset:" + x.split("offset:")[1], "offset:" + str(int(x.split("offset:")[1]) - 32768 + VOFF)) if "tr_b16" in x else x for x in r]

def emit_ops(a, ops, npre, extra=()):
    ms = MS3(a, ops)
    extra = list(extra)
    n = len(ops)
    issued = npre
    total = 0
    lastpos = {i: -1 for i in range(npre)}
    for i in range(n):
        while issued < min(n, i + ms.ahead + 1):
            for s in ms.reads(issued):
                a(s); total += 1
            lastpos[issued] = total
            issued += 1
        if lastpos[i] >= 0:
            a(f"s_waitcnt lgkmcnt({min(total - lastpos[i], 15)})")
        a(ms.mfma(i))
        if extra and i % 2 == 1:
            for s in extra.pop(0): a(s)
    assert not extra

def gen_b(a):
    a.label("L_b_start")
    a(f"s_and_b32 s{S_T0}, s2, 7")
    a(f"s_lshr_b32 s{S_T1}, s2, 3")
    a(f"s_lshl_b32 s{S_T0}, s{S_T0}, 2")
    a(f"s_and_b32 s{S_I}, s{S_T1}, 3")
    a(f"s_add_u32 s{S_T0}, s{S_T0}, s{S_I}")
    a(f"s_lshr_b32 s{S_I}, s{S_T1}, 2")
    a(f"s_lshl_b32 s{S_HOFF}, s{S_T0}, 8")
    sz = 2048 * 4096 * 2
    make_srd(a, SQ, D_WS, WS_QB, S_HOFF, WS_QB + sz)
    make_srd(a, SK, D_WS, WS_KB, S_HOFF, WS_KB + sz)
    make_srd(a, SV, D_WS, WS_VB, S_HOFF, WS_VB + sz)
    make_srd(a, SO, D_WS, WS_OB, S_HOFF, WS_OB + sz)
    a(f"s_mov_b32 s{S_THR}, 0x{f32bits(THR):x}")
    a(f"s_mov_b32 s{S_NEGBIG}, 0x{f32bits(NEG_BIG):x}")
    a(f"s_lshl_b32 s{S_N0}, s{S_I}, 1")
    a(f"s_add_u32 s{S_N0}, s{S_N0}, 2")
    a(f"s_mov_b32 s{S_OFF}, 0")
    a(f"s_lshl_b32 s{S_QB}, s{S_I}, 7")
    b_q_addr(a, S_QB)
    b_q_loads(a, V_Q)
    b_reset(a)
    t0, t1, t2, t3 = V_T, V_T + 1, V_T + 2, V_T + 3
    a(f"s_lshl_b32 s{S_T1}, s{S_W}, 2")
    a(f"v_lshrrev_b32 v{t0}, 4, v{V_L}")
    a(f"v_add_u32 v{t1}, s{S_T1}, v{t0}")
    a(f"v_and_b32 v{t2}, 15, v{V_L}")
    a(f"v_xor_b32 v{t3}, v{t2}, v{t1}")
    a(f"v_lshlrev_b32 v{t1}, 13, v{t1}")
    a(f"v_lshl_add_u32 v{V_KD}, v{t3}, 4, v{t1}")
    a(f"v_lshlrev_b32 v{t0}, 2, v{t0}")
    a(f"v_xor_b32 v{t3}, v{t2}, v{t0}")
    a(f"v_lshl_add_u32 v{V_VD}, v{t3}, 4, v{t1}")
    a(f"s_lshl_b32 s{S_KM0}, s{S_W}, 10")
    a(f"s_add_u32 s{S_VM0}, s{S_KM0}, {VOFF}")
    a(f"s_mov_b32 s{S_DSLOT}, 0")
    a(f"s_mov_b32 s{S_RSLOT}, 0")
    a(f"v_and_b32 v{t0}, 31, v{V_L}")
    a(f"v_lshlrev_b32 v{t0}, 8, v{t0}")
    a(f"v_lshrrev_b32 v{t1}, 5, v{V_L}")
    a(f"v_xor_b32 v{t2}, v{t2}, v{t1}")
    for ks in range(8):
        a(f"v_xor_b32 v{t3}, {2*ks}, v{t2}")
        a(f"v_lshl_add_u32 v{V_KA+ks}, v{t3}, 4, v{t0}")
    a(f"v_bfe_u32 v{t0}, v{V_L}, 2, 2")
    a(f"v_lshl_add_u32 v{t1}, v{t1}, 2, v{t0}")
    a(f"v_lshlrev_b32 v{t1}, 8, v{t1}")
    a(f"v_and_b32 v{t2}, 1, v{V_L}")
    a(f"v_lshl_add_u32 v{t1}, v{t2}, 3, v{t1}")
    a(f"v_bfe_u32 v{t2}, v{V_L}, 4, 1")
    a(f"v_bfe_u32 v{t3}, v{V_L}, 1, 1")
    a(f"v_lshl_add_u32 v{t2}, v{t2}, 1, v{t3}")
    a(f"v_lshlrev_b32 v{t0}, 2, v{t0}")
    for db in range(4):
        a(f"v_add_u32 v{t3}, {4*db}, v{t2}")
        a(f"v_xor_b32 v{t3}, v{t3}, v{t0}")
        a(f"v_lshl_add_u32 v{V_VA+db}, v{t3}, 4, v{t1}")
    a(f"s_mov_b32 s{S_VSRC}, 0")
    a(f"s_mov_b32 s{S_KSRC}, 0")
    for g in dma_groups3():
        for x in g: a(x)
    a(f"s_mov_b32 s{S_VSRC}, {1<<19}")
    a(f"s_mov_b32 s{S_KSRC}, {1<<19}")
    for g in dma_groups3():
        for x in g: a(x)
    a(f"s_lshl_b32 s{S_T0}, s{S_I}, 8")
    a(f"s_sub_u32 s{S_T0}, {15*128}, s{S_T0}")
    a(f"s_lshl_b32 s{S_T0}, s{S_T0}, 13")
    for ks in range(8):
        a(f"buffer_load_dwordx4 {vr(V_Q2+4*ks,4)}, v{V_OO}, s[{SQ}:{SQ+3}], s{S_T0} offen offset:{ks*32}")
    a(f"s_mov_b32 s{S_T}, 0")
    job_flags(a)
    a("s_waitcnt vmcnt(8)")
    a("s_barrier")
    msq = MS3(a, QK_OPS)
    for i in range(KPRE):
        for x in msq.reads(i): a(x)
    a("s_waitcnt lgkmcnt(0)")
    a("s_branch L_b_loop1")
    a.label("L_b_loop")
    a("s_barrier")
    a.label("L_b_loop1")
    a(f"s_cmp_eq_u32 s{S_T}, s{S_N0}")
    a("s_cbranch_scc1 L_b_switch")
    a.label("L_b_go")
    cst(a, 0, S_T, 20)
    cst(a, 5, S_T, 21)
    dma_params(a)
    a(f"s_cmp_eq_u32 s{S_ACT}, 0")
    a("s_cbranch_scc1 L_b_inact")
    emit_ops(a, QK_OPS, KPRE, dma_groups3())
    cst(a, 1, S_T, 20)
    ms = MS3(a, PV_OPS)
    NPRE = 4
    for i in range(NPRE):
        for x in ms.reads(i): a(x)
    a("s_nop 3")
    a(f"s_cmp_eq_u32 s{S_MSK}, 0")
    a("s_cbranch_scc1 L_b_nomask")
    a(f"s_lshl_b32 s{S_T0}, s{S_KVT}, 6")
    a(f"v_subrev_u32 v{V_DQ}, s{S_T0}, v{V_QO}")
    a(f"v_mov_b32 v{V_T}, s{S_NEGBIG}")
    for kvb in range(2):
        for r4 in range(4):
            for r in range(4):
                a(f"v_cmp_le_i32 s[{S_MK+2*r}:{S_MK+2*r+1}], {kvb*32 + 8*r4 + r}, v{V_DQ}")
            for r in range(4):
                rr = V_S + kvb*16 + r4*4 + r
                a(f"v_cndmask_b32 v{rr}, v{V_T}, v{rr}, s[{S_MK+2*r}:{S_MK+2*r+1}]")
    a.label("L_b_nomask")
    a(f"s_cmp_eq_u32 s{S_FIRST}, 1")
    a("s_cbranch_scc1 L_b_first")
    exp_block(a, V_S, None)
    a(f"v_cmp_nge_f32 vcc, s{S_THR}, v{V_SUM}")
    a("s_nop 0")
    a("s_cbranch_vccnz L_b_fallback")
    a.label("L_b_cont")
    cst(a, 2, S_T, 20)
    a(f"v_add_f32 v{V_LS}, v{V_LS}, v{V_SUM}")
    a("s_waitcnt lgkmcnt(0)")
    emit_ops(a, PV_OPS, NPRE)
    a.label("L_b_end")
    cst(a, 3, S_T, 20)
    a(f"s_add_u32 s{S_RSLOT}, s{S_RSLOT}, 1")
    a(f"s_cmp_eq_u32 s{S_RSLOT}, 3")
    a(f"s_cselect_b32 s{S_RSLOT}, 0, s{S_RSLOT}")
    a(f"s_cselect_b32 s{S_DELTA}, -2, 1")
    a(f"s_lshl_b32 s{S_DELTA}, s{S_DELTA}, 14")
    for ks in range(8):
        a(f"v_add_u32 v{V_KA+ks}, s{S_DELTA}, v{V_KA+ks}")
    for db in range(4):
        a(f"v_add_u32 v{V_VA+db}, s{S_DELTA}, v{V_VA+db}")
    msq = MS3(a, QK_OPS)
    for i in range(KPRE):
        for x in msq.reads(i): a(x)
    a(f"s_add_u32 s{S_T}, s{S_T}, 1")
    job_flags(a)
    a("s_waitcnt vmcnt(0) lgkmcnt(0)")
    cst(a, 4, S_T, 21)
    a(f"s_cmp_lt_u32 s{S_T}, {NSTEP}")
    a("s_cbranch_scc1 L_b_loop")
    a("s_nop 15")
    b_epilogue(a)
    dump(a)
    a("s_branch L_k2_end")
    a.label("L_b_inact")
    for g in dma_groups3():
        for x in g: a(x)
    a("s_branch L_b_end")
    a.label("L_b_switch")
    a("s_nop 15")
    b_epilogue(a)
    a(f"s_lshl_b32 s{S_T0}, s{S_I}, 7")
    a(f"s_sub_u32 s{S_QB}, {15*128}, s{S_T0}")
    a("s_nop 1")
    b_q_addr(a, S_QB)
    for i in range(32):
        a(f"v_mov_b32 v{V_Q+i}, v{V_Q2+i}")
    b_reset(a)
    job_flags(a)
    msq = MS3(a, QK_OPS)
    for i in range(KPRE):
        for x in msq.reads(i): a(x)
    a("s_waitcnt lgkmcnt(0)")
    a("s_branch L_b_go")
    def rowmax():
        a(f"v_max3_f32 v{t0}, v{V_S}, v{V_S+1}, v{V_S+2}")
        for i in range(3, 31, 2):
            a(f"v_max3_f32 v{t0}, v{t0}, v{V_S+i}, v{V_S+i+1}")
        a(f"v_max_f32 v{t0}, v{t0}, v{V_S+31}")
        a(f"v_mov_b32 v{t1}, v{t0}")
        a("s_nop 1")
        a(f"v_permlane32_swap_b32 v{t0}, v{t1}")
    a.label("L_b_first")
    a(f"s_mov_b32 s{S_FIRST}, 0")
    rowmax()
    a(f"v_max_f32 v{t0}, v{t0}, v{t1}")
    a("s_branch L_b_shift")
    a.label("L_b_fallback")
    rowmax()
    a(f"v_max3_f32 v{t0}, v{t0}, v{t1}, 0")
    a(f"v_exp_f32 v{t1}, -v{t0}")
    a("s_nop 0")
    a(f"v_mul_f32 v{V_LS}, v{V_LS}, v{t1}")
    for i in range(64):
        a(f"v_mul_f32 v{V_O+i}, v{V_O+i}, v{t1}")
    a.label("L_b_shift")
    for i in range(32):
        a(f"v_sub_f32 v{V_S+i}, v{V_S+i}, v{t0}")
    for i in range(16):
        a(f"v_sub_f32 v{V_NM+i}, v{V_NM+i}, v{t0}")
    exp_block(a, V_S, None)
    a("s_branch L_b_cont")

AQ, AK, AV, AO = 4, 8, 12, 16
A_J, A_T0, A_T1 = 21, 22, 23
A_THR, A_CL = 24, 26
A_KOFF, A_VOFF = 28, 29
a_ka, a_va, a_oo = 2, 3, 4
a_ls = 5
a_sum, a_sum2, a_t0, a_t1 = 7, 14, 15, 0
a_e = 8
a_q, a_nm, a_o, a_p, a_s, a_kf, a_vf = 16, 32, 64, 96, 128, 192, 224

def a_exp(a, blk, inserts=None):
    inserts = inserts or {}
    S, P = a_s + blk * 32, a_p + blk * 16
    for pr in range(16):
        e = a_e + (pr % 3) * 2
        a(f"v_exp_f32 v{e}, v{S+2*pr}")
        a(f"v_exp_f32 v{e+1}, v{S+2*pr+1}")
        for x in inserts.get(pr, []): a(x)
        if pr > 0:
            pe = a_e + ((pr - 1) % 3) * 2
            a(f"v_cvt_pk_bf16_f32 v{P+pr-1}, v{pe}, v{pe+1}")
            if pr == 1:
                a(f"v_mov_b32 v{a_sum}, v{pe}")
                a(f"v_mov_b32 v{a_sum2}, v{pe+1}")
            else:
                a(f"v_add_f32 v{a_sum}, v{a_sum}, v{pe}")
                a(f"v_add_f32 v{a_sum2}, v{a_sum2}, v{pe+1}")
    pe = a_e + (15 % 3) * 2
    a("s_nop 0")
    a(f"v_cvt_pk_bf16_f32 v{P+15}, v{pe}, v{pe+1}")
    a(f"v_add_f32 v{a_sum}, v{a_sum}, v{pe}")
    a(f"v_add_f32 v{a_sum2}, v{a_sum2}, v{pe+1}")
    a("s_nop 0")
    a(f"v_add_f32 v{a_sum}, v{a_sum}, v{a_sum2}")

def a_qk(blk, kb):
    out = []
    for ks in range(2):
        for kvb in range(2):
            f = a_kf + kb * 16 + (kvb * 2 + ks) * 4
            d = vr(a_s + blk * 32 + kvb * 16, 16)
            c = d if ks else vr(a_nm + blk * 16, 16)
            out.append(f"v_mfma_f32_32x32x16_bf16 {d}, {vr(f,4)}, {vr(a_q+blk*8+4*ks,4)}, {c}")
    return out
def a_pv(blk, vb):
    o = vr(a_o + blk * 16, 16)
    return [f"v_mfma_f32_32x32x16_bf16 {o}, {vr(a_vf+vb*16+4*s,4)}, {vr(a_p+blk*16+4*s,4)}, {o}" for s in range(4)]
def a_kload(kb):
    return [f"buffer_load_dwordx4 {vr(a_kf+kb*16+(kvb*2+ks)*4,4)}, v{a_ka}, s[{AK}:{AK+3}], s{A_KOFF} offen offset:{kvb*2048+ks*32}"
            for kvb in range(2) for ks in range(2)] + [f"s_add_u32 s{A_KOFF}, s{A_KOFF}, 4096"]
def a_vload(vb):
    return [f"buffer_load_dwordx4 {vr(a_vf+vb*16+4*s,4)}, v{a_va}, s[{AV}:{AV+3}], s{A_VOFF} offen offset:{s*32}"
            for s in range(4)] + [f"s_add_u32 s{A_VOFF}, s{A_VOFF}, 128"]

def gen_a(a):
    a.label("L_a_start")
    a("s_lshl_b32 s65, s2, 15")
    make_srd(a, 60, IN_B_WO, 0, 65, 4096*1024*2)
    a("s_lshl_b32 s65, s2, 13")
    make_srd(a, 52, IN_A_WO, 0, 65, 1024*1024*2)
    make_srd(a, AQ, D_WS, WS_QA, None, WS_QA + 2048*1024*2)
    make_srd(a, AK, D_WS, WS_KA, None, WS_KA + 2048*32*2)
    make_srd(a, AV, D_WS, WS_VA, None, WS_VA + 2048*32*2)
    make_srd(a, AO, D_WS, WS_OA, None, WS_OA + 2048*1024*2)
    a(f"s_lshl_b32 s{A_T0}, s2, 2")
    a(f"s_add_u32 s{A_T0}, s{A_T0}, s{S_W}")
    a(f"s_sub_u32 s{A_T0}, s{A_T0}, 4")
    a(f"s_lshl_b32 s{A_T0}, s{A_T0}, 6")
    a(f"v_and_b32 v{a_t0}, 31, v{V_L}")
    a(f"v_lshrrev_b32 v{a_sum}, 5, v{V_L}")
    a(f"v_add_u32 v{a_sum2}, s{A_T0}, v{a_t0}")
    a(f"v_lshlrev_b32 v{a_oo}, 6, v{a_sum2}")
    a(f"v_lshl_add_u32 v{a_oo}, v{a_sum}, 4, v{a_oo}")
    for blk in range(2):
        for ks in range(2):
            a(f"buffer_load_dwordx4 {vr(a_q+blk*8+4*ks,4)}, v{a_oo}, s[{AQ}:{AQ+3}], 0 offen offset:{blk*2048+ks*32}")
    a(f"v_lshlrev_b32 v{a_ka}, 6, v{a_t0}")
    a(f"v_lshl_add_u32 v{a_ka}, v{a_sum}, 4, v{a_ka}")
    a(f"v_lshlrev_b32 v{a_va}, 12, v{a_t0}")
    a(f"v_lshl_add_u32 v{a_va}, v{a_sum}, 4, v{a_va}")
    a(f"s_mov_b32 s{A_KOFF}, 0")
    a(f"s_mov_b32 s{A_VOFF}, 0")
    for x in a_kload(0) + a_kload(1) + a_vload(0): a(x)
    a(f"s_sub_u32 s{A_T0}, s{S_W}, 4")
    a(f"s_lshl_b32 s{A_T0}, s{A_T0}, 10")
    a(f"v_lshlrev_b32 v{a_t0}, 4, v{V_L}")
    a(f"v_add_u32 v{a_t0}, s{A_T0}, v{a_t0}")
    for i in range(32):
        a(f"v_mov_b32 v{a_nm+i}, 0")
        a(f"v_mov_b32 v{a_o+i}, 0")
    for i in range(16):
        a(f"v_mov_b32 v{a_p+16+i}, 0")
        a(f"v_mov_b32 v{a_vf+16+i}, 0")
    a(f"v_mov_b32 v{a_ls}, 0")
    a(f"v_mov_b32 v{a_ls+1}, 0")
    for b in range(2):
        a(f"s_mov_b32 s{A_THR+b}, 0xbf800000")
        a(f"s_mov_b32 s{A_CL+b}, 0xff800000")
    a(f"s_mov_b32 s{A_J}, 0")
    a("s_waitcnt vmcnt(0)")
    for x in a_qk(0, 0): a(x)
    a(f"s_sub_u32 s66, s{S_W}, 4")
    a("s_lshl_b32 s66, s66, 10")
    a("s_add_u32 m0, s66, 0x18000")
    for i in range(8):
        a(f"s_mov_b32 s66, {i*4096}")
        a(f"buffer_load_dwordx4 v{a_t0}, s[60:63], s66 offen lds")
    for i in range(2):
        a(f"s_mov_b32 s66, {i*4096}")
        a(f"buffer_load_dwordx4 v{a_t0}, s[52:55], s66 offen lds")
    a("s_nop 7")
    a.label("L_a_loop")
    fbs = []
    def check(blk):
        fb = a.newlabel("afb"); cont = a.newlabel("acont")
        fbs.append((fb, cont, blk))
        a(f"v_cmp_nge_f32 vcc, s{A_THR+blk}, v{a_sum}")
        a("s_nop 0")
        a(f"s_cbranch_vccnz {fb}")
        a.label(cont)
        a(f"v_add_f32 v{a_ls+blk}, v{a_ls+blk}, v{a_sum}")
    for par in range(2):
        a("s_barrier")
        if par == 0:
            a.label("L_a_loop_nb")
        if par == 0: cst(a, 0, A_J, 20)
        else: cst(a, 3, A_J, 20)
        a_exp(a, 0)
        check(0)
        if par == 0: cst(a, 1, A_J, 20)
        a("s_waitcnt vmcnt(0)")
        for x in a_qk(1, par) + a_pv(1, par ^ 1) + a_pv(0, par) + a_qk(0, par ^ 1): a(x)
        ins = {}
        ld = a_kload(par) + a_vload(par ^ 1)
        for i, x in enumerate(ld):
            ins.setdefault(i, []).append(x)
        a_exp(a, 1, ins)
        check(1)
        if par == 0: cst(a, 2, A_J, 20)
    a(f"s_add_u32 s{A_J}, s{A_J}, 2")
    a(f"s_cmp_lt_u32 s{A_J}, 32")
    a("s_cbranch_scc1 L_a_loop")
    for x in a_pv(1, 1): a(x)
    a("s_barrier")
    a("s_barrier")
    a("s_nop 15")
    for blk in range(2):
        O = a_o + blk * 16
        t = a_p + blk * 16
        a(f"v_mov_b32 v{a_t0}, v{a_ls+blk}")
        a(f"v_mov_b32 v{a_t1}, v{a_ls+blk}")
        a("s_nop 1")
        a(f"v_permlane32_swap_b32 v{a_t0}, v{a_t1}")
        a(f"v_add_f32 v{a_t0}, v{a_t0}, v{a_t1}")
        a(f"v_rcp_f32 v{a_t0}, v{a_t0}")
        a("s_nop 0")
        for i in range(16):
            a(f"v_mul_f32 v{O+i}, v{a_t0}, v{O+i}")
        for q in range(4):
            a(f"v_cvt_pk_bf16_f32 v{t+2*q}, v{O+4*q}, v{O+4*q+1}")
            a(f"v_cvt_pk_bf16_f32 v{t+2*q+1}, v{O+4*q+2}, v{O+4*q+3}")
        a("s_nop 1")
        for q in (0, 2):
            a(f"v_permlane32_swap_b32 v{t+2*q}, v{t+2*q+2}")
            a(f"v_permlane32_swap_b32 v{t+2*q+1}, v{t+2*q+3}")
        for q in (0, 2):
            a(f"buffer_store_dwordx4 {vr(t+2*q,4)}, v{a_oo}, s[{AO}:{AO+3}], 0 offen offset:{blk*2048+q*16}")
    dump(a)
    a("s_branch L_k2_end")
    for blk in range(2):
        S = a_s + blk * 32
        a.label(f"L_a_fb{blk}")
        a("s_nop 15")
        a(f"v_max3_f32 v{a_t0}, v{S}, v{S+1}, v{S+2}")
        for i in range(3, 31, 2):
            a(f"v_max3_f32 v{a_t0}, v{a_t0}, v{S+i}, v{S+i+1}")
        a(f"v_max_f32 v{a_t0}, v{a_t0}, v{S+31}")
        a(f"v_mov_b32 v{a_t1}, v{a_t0}")
        a("s_nop 1")
        a(f"v_permlane32_swap_b32 v{a_t0}, v{a_t1}")
        a(f"v_max3_f32 v{a_t0}, v{a_t0}, v{a_t1}, s{A_CL+blk}")
        a(f"v_max_f32 v{a_t1}, 0, v{a_t0}")
        a(f"v_exp_f32 v{a_t1}, -v{a_t1}")
        for i in range(32):
            a(f"v_sub_f32 v{S+i}, v{S+i}, v{a_t0}")
        for i in range(16):
            a(f"v_sub_f32 v{a_nm+blk*16+i}, v{a_nm+blk*16+i}, v{a_t0}")
            a(f"v_mul_f32 v{a_o+blk*16+i}, v{a_o+blk*16+i}, v{a_t1}")
        a(f"v_mul_f32 v{a_ls+blk}, v{a_ls+blk}, v{a_t1}")
        a(f"s_mov_b32 s{A_THR+blk}, 0x{f32bits(THR):x}")
        a(f"s_mov_b32 s{A_CL+blk}, 0")
        a_exp(a, blk)
        a("s_setpc_b64 s[30:31]")
    for fb, cont, blk in fbs:
        a.label(fb)
        a("s_getpc_b64 s[30:31]")
        lab = a.newlabel("pc")
        a.label(lab)
        a(f"s_add_u32 s30, s30, {cont}-{lab}")
        a(f"s_addc_u32 s31, s31, -1")
        a(f"s_branch L_a_fb{blk}")

def gen_k2(a):
    name = "k2_attn_kernel"
    kernel_header(a, name)
    tl_start(a)
    load_ptrs(a)
    a("s_cmp_ge_u32 s2, 256")
    a("s_cbranch_scc1 L_k2_end")
    a(f"v_and_b32 v{V_L}, 63, v0")
    a(f"v_lshrrev_b32 v{V_T}, 6, v0")
    a("s_nop 0")
    a(f"v_readfirstlane_b32 s{S_W}, v{V_T}")
    a("s_waitcnt lgkmcnt(0)")
    a("s_nop 3")
    a(f"s_cmp_ge_u32 s{S_W}, 4")
    a("s_cbranch_scc1 L_a_start")
    gen_b(a)
    gen_a(a)
    a.label("L_k2_end")
    tl_end(a, 1)
    a("s_endpgm")
    return name, (256, 512, 98304 + 4096)
```
